```python
import torch

def _softmax(x, axis=-1):
    return torch.softmax(x, dim=axis)
def _gelu(x):
    return torch.nn.functional.gelu(x, approximate="tanh")
def _silu(x):
    return torch.nn.functional.silu(x)
def _sigmoid(x):
    return torch.sigmoid(x)
def _layernorm(x, axis=-1, eps=1e-5):
    m = x.mean(dim=axis, keepdim=True)
    v = x.var(dim=axis, keepdim=True, unbiased=False)
    return (x - m) / torch.sqrt(v + eps)
def _scatter_add(tgt, idx, src, axis=0):
    return tgt.clone().index_add_(axis, idx, src)
def _segment_sum(src, seg, n):
    out = torch.zeros((n,) + src.shape[1:], dtype=src.dtype)
    return out.index_add_(0, seg, src)
def _pad(x, pw):
    flat = tuple(v for pair in reversed(pw) for v in pair)
    return torch.nn.functional.pad(x, flat)

kernel_name = 'sequential_preLN__spectral_gfnet__mixer_s_mlp__prompt'

def setup_inputs():

    _w = (lambda a: (lambda t: t.to(torch.bfloat16) if t.is_floating_point() else t)(torch.as_tensor(a)))
    def _A_setup():
        B, S, D = 1, 2048, 640
        Df = D // 2 + 1
        return {
            "x": _w((lambda *s: torch.randn(*s, dtype=torch.bfloat16) * 0.05)(B, S, D)),
            "w_r": _w((lambda *s: torch.randn(*s, dtype=torch.bfloat16) * 0.4)(S, Df) * 0.02),
            "w_i": _w((lambda *s: torch.randn(*s, dtype=torch.bfloat16) * 0.4)(S, Df) * 0.02),
        }
    _A_in = _A_setup()

    def _B_setup():
        B, S, D, F = 1, 2048, 640, 1728
        return {
            "x":  _w((lambda *s: torch.randn(*s, dtype=torch.bfloat16) * 0.05)(B, S, D)),
            "w1": _w((lambda *s: torch.randn(*s, dtype=torch.bfloat16) * 0.8)(D, D) * (D ** -0.5)),
            "w2": _w((lambda *s: torch.randn(*s, dtype=torch.bfloat16) * 0.8)(D, D) * (D ** -0.5)),
            "w3": _w((lambda *s: torch.randn(*s, dtype=torch.bfloat16) * 0.8)(D, F) * (D ** -0.5)),
            "w4": _w((lambda *s: torch.randn(*s, dtype=torch.bfloat16) * 0.8)(F, D) * (F ** -0.5)),
        }
    _B_in = _B_setup()

    return {
        "A_x": _A_in["x"],
        "A_w_r": _A_in["w_r"],
        "A_w_i": _A_in["w_i"],
        "B_x": _B_in["x"],
        "B_w1": _B_in["w1"],
        "B_w2": _B_in["w2"],
        "B_w3": _B_in["w3"],
        "B_w4": _B_in["w4"],
    }

def reference(A_x, A_w_r, A_w_i, B_x, B_w1, B_w2, B_w3, B_w4):
    def _A_ref(x, w_r, w_i):
        B, S, D = x.shape
        X = (lambda x, axes=(-2,-1): torch.fft.rfft2(x.float(), dim=axes))(x, axes=(-2, -1))
        W = w_r + 1j * w_i
        X = X * W
        y = (lambda x, s, axes=(-2,-1): torch.fft.irfft2(x, s=s, dim=axes).to(torch.bfloat16))(X, (S, D), axes=(-2, -1))
        return y

    def _B_ref(x, w1, w2, w3, w4):
        B, S, D = x.shape
        h = _gelu(_layernorm(x, axis=-1) @ w1)
        c = D // 4
        g0 = _pad(h[:, :, 0*c:1*c], ((0, 0), (1, 0), (0, 0)))[:, :S, :]
        g1 = _pad(h[:, :, 1*c:2*c], ((0, 0), (0, 1), (0, 0)))[:, 1:, :]
        g2 = _pad(h[:, :, 2*c:3*c], ((0, 0), (2, 0), (0, 0)))[:, :S, :]
        g3 = _pad(h[:, :, 3*c:   ], ((0, 0), (0, 2), (0, 0)))[:, 2:, :]
        hs = torch.concatenate([g0, g1, g2, g3], axis=-1) @ w2
        x1 = x + hs
        h2 = _gelu(_layernorm(x1, axis=-1) @ w3) @ w4
        return x1 + h2

    x = A_x
    h = x + _A_ref(_layernorm(x, axis=-1), A_w_r, A_w_i)
    h2 = h + _B_ref(_layernorm(h, axis=-1), B_w1, B_w2, B_w3, B_w4)
    return h2
```

```python
import numpy as np
from lib import *

S, D, DF, F = 2048, 640, 321, 1728
BLK = 324 * 32
def al(x, a=4096): return (x + a - 1) // a * a
WS = {}
_off = 0
def region(name, nbytes):
    global _off
    WS[name] = (_off, nbytes)
    _off = al(_off + nbytes)
region('XB', 256 * BLK)
region('WB', 256 * BLK)
region('Z', DF * S * 4)
region('H', 20 * S * 64)
region('LN1', 20 * S * 64)
HHR = S + 4
region('HH', 20 * HHR * 64)
region('X1', 20 * S * 64)
region('ST1', S * 64)
region('G', 54 * S * 64)
region('W1F', 4 * 20 * 10 * 1024)
region('W2F', 8 * 20 * 5 * 1024)
region('W3F', 16 * 20 * 7 * 1024)
region('W4F', 8 * 56 * 5 * 1024)
region('CS3', 112 * 16 * 4)

KA = dict(x=0, wr=8, wi=16, w1=32, w2=40, w3=48, w4=56, out=64, dbg=72, ws=80)


def bf16_bits(x):
    x = np.asarray(x, dtype=np.float32)
    u = x.view(np.uint32).astype(np.uint64)
    r = (u + 0x7fff + ((u >> 16) & 1)) >> 16
    return (r & 0xffff).astype(np.uint32)


def pack_frag(M):
    b = bf16_bits(M)
    return (b[:, 0::2] | (b[:, 1::2] << 16)).astype(np.uint32)


def f32_bits(x):
    return np.asarray(x, dtype=np.float32).view(np.uint32)


def table_text(label, words):
    words = np.asarray(words, dtype=np.uint32).ravel()
    L = ['.p2align 8', label + ':']
    for i in range(0, len(words), 8):
        L.append('.long ' + ','.join('0x%x' % w for w in words[i:i + 8]))
    return '\n'.join(L)


def srd_from(k, dst, base, off, nbytes):
    if off:
        k('s_add_u32 %s, %s, 0x%x' % (s(dst), s(base), off))
        k('s_addc_u32 %s, %s, 0' % (s(dst + 1), s(base + 1)))
    elif dst != base:
        k('s_mov_b32 %s, %s' % (s(dst), s(base)))
        k('s_mov_b32 %s, %s' % (s(dst + 1), s(base + 1)))
    k('s_mov_b32 %s, 0x%x' % (s(dst + 2), nbytes))
    k('s_mov_b32 %s, 0x00020000' % s(dst + 3))


def srd_ws(k, dst, wsbase, name):
    off, n = WS[name]
    srd_from(k, dst, wsbase, off, n)


def srd_table(k, dst, label, nbytes):
    l = k.newlabel('pc')
    k('s_getpc_b64 %s' % s(dst, 2))
    k.label(l)
    k('s_add_u32 %s, %s, %s-%s' % (s(dst), s(dst), label, l))
    k('s_addc_u32 %s, %s, 0' % (s(dst + 1), s(dst + 1)))
    k('s_mov_b32 %s, 0x%x' % (s(dst + 2), nbytes))
    k('s_mov_b32 %s, 0x00020000' % s(dst + 3))


def kernel_text(k, tables=''):
    nv = k.maxv + 1
    acc = (max(nv, 4) + 3) // 4 * 4
    na = k.maxa + 1
    nfv = acc + na if na else max(nv, 1)
    code = '.globl %s\n.p2align 8\n.type %s,@function\n%s:\n%s\n%s\n' % (k.name, k.name, k.name, k.text(), tables)
    desc = ('.p2align 6\n.amdhsa_kernel %s\n  .amdhsa_next_free_vgpr %d\n  .amdhsa_next_free_sgpr 102\n'
            '  .amdhsa_accum_offset %d\n  .amdhsa_group_segment_fixed_size 0\n  .amdhsa_kernarg_size 88\n'
            '  .amdhsa_user_sgpr_count 2\n  .amdhsa_user_sgpr_kernarg_segment_ptr 1\n'
            '  .amdhsa_system_sgpr_workgroup_id_x 1\n.end_amdhsa_kernel\n') % (k.name, nfv, acc)
    return code, desc


MFMA = 'v_mfma_f32_16x16x32_bf16'
```

```python
from common import *
from k1 import rnd_bf16

CK = 4

def gelu(k, x, t, sc1, sc2):
    for a_, b_ in zip(x, t):
        k('v_mul_f32 %s, %s, %s' % (v(b_), v(a_), v(a_)))
    for a_, b_ in zip(x, t):
        k('v_fma_f32 %s, %s, %s, %s' % (v(b_), v(b_), v(sc2), sc1))
    for a_, b_ in zip(x, t):
        k('v_mul_f32 %s, %s, %s' % (v(b_), v(b_), v(a_)))
    for a_, b_ in zip(x, t):
        k('v_exp_f32 %s, %s' % (v(b_), v(b_)))
    for a_, b_ in zip(x, t):
        k('v_add_f32 %s, 1.0, %s' % (v(b_), v(b_)))
    for a_, b_ in zip(x, t):
        k('v_rcp_f32 %s, %s' % (v(b_), v(b_)))
    for a_, b_ in zip(x, t):
        k('v_mul_f32 %s, %s, %s' % (v(a_), v(a_), v(b_)))

G1 = -2 * np.log2(np.e) * np.sqrt(2 / np.pi)
G2 = G1 * 0.044715

def qsum(k, x, t):
    k('v_mov_b32 %s, %s' % (v(t), v(x)))
    k('v_permlane32_swap_b32 %s, %s' % (v(x), v(t)))
    k('v_add_f32 %s, %s, %s' % (v(x), v(x), v(t)))
    k('v_mov_b32 %s, %s' % (v(t), v(x)))
    k('v_permlane16_swap_b32 %s, %s' % (v(x), v(t)))
    k('v_add_f32 %s, %s, %s' % (v(x), v(x), v(t)))


def gemm_lds(kind):
    return {'k5': 5 * 20 * 1024, 'k6': 5 * 28 * 1024, 'k7': 7 * 20 * 1024}[kind]


def emit_gemm(kind):
    MT, NT, NK, NKp, AREG, AROWS, AOFF, WREG, SLOTS = {
        'k5': (1, 5, 20, 20, 'HH', HHR, 2, 'W2F', 5),
        'k6': (2, 7, 20, 20, 'X1', S, 0, 'W3F', 5),
        'k7': (1, 5, 54, 56, 'G', S, 0, 'W4F', 7),
    }[kind]
    NP = NT // 2
    NCH = NKp // CK
    CHB = CK * NT * 1024
    def fn(k, wg0):
        va = Alloc(1)
        k('s_load_dwordx2 s[16:17], s[0:1], %d' % KA['ws'])
        if kind == 'k7':
            k('s_load_dwordx2 s[40:41], s[0:1], %d' % KA['out'])
        ti, tq, l16, ao, tmp = [va() for _ in range(5)]
        k('v_lshrrev_b32 %s, 6, v0' % v(ti))
        k('v_and_b32 %s, 63, v0' % v(l16))
        k('v_readfirstlane_b32 s20, %s' % v(ti))
        k('v_and_b32 %s, 15, v0' % v(ti))
        k('v_lshrrev_b32 %s, 4, %s' % (v(tq), v(l16)))
        k('v_lshlrev_b32 %s, 4, %s' % (v(l16), v(l16)))
        k('v_lshlrev_b32 %s, 4, %s' % (v(ao), v(tq)))
        k('v_lshl_add_u32 %s, %s, 6, %s' % (v(ao), v(ti), v(ao)))
        rbits = 3 if MT == 1 else 2
        k('s_bfe_u32 s21, s2, 0x20001')
        k('s_lshl_b32 s21, s21, %d' % rbits)
        k('s_bfe_u32 s23, s2, 0x%x' % ((rbits << 16) | 3))
        k('s_add_u32 s21, s21, s23')
        k('s_and_b32 s22, s2, 1')
        k('s_lshl_b32 s22, s22, %d' % (5 - rbits))
        k('s_lshr_b32 s23, s2, %d' % (3 + rbits))
        k('s_add_u32 s22, s22, s23')
        k('s_lshl_b32 s23, s21, 2')
        k('s_add_u32 s23, s23, s20')
        k('s_lshl_b32 s23, s23, %d' % (10 if MT == 1 else 11))
        k('s_add_u32 s24, s23, %d' % (AOFF * 64))
        k('s_mul_i32 s25, s22, %d' % (NKp * NT))
        k('s_mul_i32 s26, s20, %d' % NT)
        k('s_add_u32 s25, s25, s26')
        k('s_lshl_b32 s25, s25, 10')
        k('s_lshl_b32 s26, s26, 10')
        k('s_lshr_b32 s27, s22, 1')
        k('s_mul_i32 s27, s27, %d' % NT)
        k('s_add_u32 s28, s27, %d' % NP)
        k('s_and_b32 s29, s22, 1')
        k('s_mul_i32 s30, s29, %d' % (NP + 1))
        k('s_add_u32 s27, s27, s30')
        k('s_lshl_b32 s29, s29, 5')
        srd_ws(k, 4, 16, WREG)
        srd_ws(k, 8, 16, AREG)
        ACT = 0
        toks = {}
        def issue(c):
            slot = c % SLOTS
            for t in range(NT):
                if t % 4 == 0:
                    k('s_add_u32 m0, s26, %d' % (slot * CHB + t * 1024))
                    if t:
                        k('s_add_u32 s31, s25, %d' % (t * 1024))
                toks[c] = k.op('buffer_load_dwordx4 %s, s[4:7], %s offen offset:%d lds' % (v(l16), 's31' if t >= 4 else 's25', (t % 4) * 1024))
            k('s_add_u32 s25, s25, %d' % CHB)
            for ks in range(c * CK, min(NK, c * CK + CK)):
                for m in range(MT):
                    k('buffer_load_dwordx4 %s, %s, s[8:11], s24 offen offset:%d' % (a(ACT + 4 * (ks * MT + m), 4), v(ao), m * 1024))
                k('s_add_u32 s24, s24, %d' % (AROWS * 64))
        acc = [[va(4, 4) for t in range(NT)] for m in range(MT)]
        WB = [[va(4, 4) for t in range(NT)] for b in range(2)]
        issue(0)
        ho = va()
        k('v_lshlrev_b32 %s, 3, %s' % (v(ho), v(tq)))
        k('v_lshl_add_u32 %s, %s, 6, %s' % (v(ho), v(ti), v(ho)))
        k('s_lshl_b32 s32, s27, 17')
        k('s_add_u32 s32, s32, s23')
        for p in range(1, NP):
            k('s_add_u32 %s, s32, %d' % (s(32 + p), p << 17))
        k('s_lshl_b32 s35, s28, 17')
        k('s_add_u32 s35, s35, s23')
        k('s_add_u32 s35, s35, s29')
        k('s_mov_b32 s36, 0xffff0000')
        def ld_tile(R, srd):
            for p in range(NP):
                k('buffer_load_dwordx4 %s, %s, %s, %s offen' % (v(R + 4 * p, 4), v(ao), s(srd, 4), s(32 + p)))
            k('buffer_load_dwordx2 %s, %s, %s, s35 offen' % (v(R + 4 * NP, 2), v(ho), s(srd, 4)))
        def elems():
            for p in range(NP):
                for r in range(4):
                    for h in range(2):
                        yield acc[0][2 * p + h] + r, 4 * p + r, h
            for r in range(4):
                yield acc[0][NT - 1] + r, 4 * NP + r // 2, r % 2
        if kind == 'k5':
            R1 = va(10, 4)
            srd_ws(k, 12, 16, 'LN1')
            ld_tile(R1, 12)
        elif kind == 'k7':
            R1, R2 = va(10, 4), va(10, 4)
            srd_ws(k, 12, 16, 'H')
            ld_tile(R1, 12)
            srd_ws(k, 44, 16, 'X1')
            ld_tile(R2, 44)
        else:
            ST, CS = va(8, 4), va(4 * NT, 4)
            srd_ws(k, 12, 16, 'ST1')
            for m in range(MT):
                k('buffer_load_dwordx4 %s, %s, s[12:15], s23 offen offset:%d' % (v(ST + 4 * m, 4), v(ao), m * 1024))
            srd_ws(k, 44, 16, 'CS3')
            k('v_lshlrev_b32 %s, 4, %s' % (v(tmp), v(tq)))
            k('s_mul_i32 s37, s22, %d' % (NT * 64))
            for t in range(NT):
                k('buffer_load_dwordx4 %s, %s, s[44:47], s37 offen offset:%d' % (v(CS + 4 * t, 4), v(tmp), t * 64))
        for c in range(1, min(SLOTS, NCH)):
            issue(c)
        cinit = kind != 'k6'
        if kind == 'k5':
            for (ar, d, h) in elems():
                k(('v_and_b32 %s, s36, %s' if h else 'v_lshlrev_b32 %s, 16, %s') % (v(ar), v(R1 + d)))
        elif kind == 'k7':
            for (ar, d, h) in elems():
                k(('v_and_b32 %s, s36, %s' if h else 'v_lshlrev_b32 %s, 16, %s') % (v(ar), v(R1 + d)))
                k(('v_and_b32 %s, s36, %s' if h else 'v_lshlrev_b32 %s, 16, %s') % (v(tmp), v(R2 + d)))
                k('v_add_f32 %s, %s, %s' % (v(ar), v(ar), v(tmp)))
        else:
            RS, MR = va(2), va(2)
            for m in range(MT):
                sm, sq = ST + 4 * m, ST + 4 * m + 1
                k('v_add_f32 %s, %s, %s' % (v(sm), v(sm), v(sm + 2)))
                k('v_add_f32 %s, %s, %s' % (v(sq), v(sq), v(sq + 2)))
                qsum(k, sm, sm + 2)
                qsum(k, sq, sq + 2)
                k('v_mul_f32 %s, 0x3acccccd, %s' % (v(sm), v(sm)))
                k('v_mul_f32 %s, 0x3acccccd, %s' % (v(sq), v(sq)))
                k('v_fma_f32 %s, -%s, %s, %s' % (v(sq), v(sm), v(sm), v(sq)))
                k('v_max_f32 %s, 0, %s' % (v(sq), v(sq)))
                rnd_bf16(k, sq, sq)
                rnd_bf16(k, sm, sm)
                k('v_add_f32 %s, 0x3727c5ac, %s' % (v(sq), v(sq)))
                rnd_bf16(k, sq, sq)
                k('v_sqrt_f32 %s, %s' % (v(sq), v(sq)))
                rnd_bf16(k, sq, sq)
                k('v_rcp_f32 %s, %s' % (v(RS + m), v(sq)))
                k('v_mul_f32 %s, %s, %s' % (v(MR + m), v(sm), v(RS + m)))
        lb = [l16, va(), va()]
        k('v_add_u32 %s, 0x10000, %s' % (v(lb[1]), v(l16)))
        k('v_add_u32 %s, 0x20000, %s' % (v(lb[2]), v(l16)))
        def reads(ks):
            c = ks // CK
            for t in range(NT):
                off = (c % SLOTS) * CHB + ((ks % CK) * NT + t) * 1024
                k('ds_read_b128 %s, %s offset:%d' % (v(WB[ks % 2][t], 4), v(lb[off >> 16]), off & 0xffff))
        def mfmas(ks):
            for t in range(NT):
                for m in range(MT):
                    k('%s %s, %s, %s, %s' % (MFMA, v(acc[m][t], 4), v(WB[ks % 2][t], 4), a(ACT + 4 * (ks * MT + m), 4),
                                             v(acc[m][t], 4) if (ks or cinit) else '0'))
        for ks in range(NK + 1):
            if ks < NK:
                if ks % CK == 0:
                    c = ks // CK
                    k.barrier(vm=toks[c])
                    if c >= 1 and c - 1 + SLOTS < NCH:
                        issue(c - 1 + SLOTS)
                reads(ks)
            if ks:
                mfmas(ks - 1)
        if kind == 'k5' or kind == 'k7':
            P = R1
            for p in range(NP):
                for r in range(4):
                    k('v_cvt_pk_bf16_f32 %s, %s, %s' % (v(P + 4 * p + r), v(acc[0][2 * p] + r), v(acc[0][2 * p + 1] + r)))
            for r in range(2):
                k('v_cvt_pk_bf16_f32 %s, %s, %s' % (v(P + 4 * NP + r), v(acc[0][NT - 1] + 2 * r), v(acc[0][NT - 1] + 2 * r + 1)))
        if kind == 'k5':
            srd_ws(k, 12, 16, 'X1')
            for p in range(NP):
                k('buffer_store_dwordx4 %s, %s, s[12:15], %s offen' % (v(P + 4 * p, 4), v(ao), s(32 + p)))
            k('buffer_store_dwordx2 %s, %s, s[12:15], s35 offen' % (v(P + 4 * NP, 2), v(ho)))
            sm = va(2, 2)
            t2 = va()
            k('s_mov_b32 s37, 0x3f803f80')
            k('v_mov_b32 %s, 0' % v(sm))
            k('v_mov_b32 %s, 0' % v(sm + 1))
            for d in range(10):
                k('v_dot2_f32_bf16 %s, %s, s37, %s' % (v(sm), v(P + d), v(sm)))
                k('v_dot2_f32_bf16 %s, %s, %s, %s' % (v(sm + 1), v(P + d), v(P + d), v(sm + 1)))
            qsum(k, sm, tmp)
            qsum(k, sm + 1, t2)
            srd_ws(k, 8, 16, 'ST1')
            k('s_lshl_b32 s37, s22, 3')
            k('s_add_u32 s37, s37, s23')
            k('v_lshlrev_b32 %s, 30, %s' % (v(tmp), v(tq)))
            k('v_lshrrev_b32 %s, 2, %s' % (v(tmp), v(tmp)))
            k('v_lshl_add_u32 %s, %s, 6, %s' % (v(tmp), v(ti), v(tmp)))
            k('buffer_store_dwordx2 %s, %s, s[8:11], s37 offen' % (v(sm, 2), v(tmp)))
        elif kind == 'k7':
            srd_from(k, 12, 40, 0, S * D * 2)
            k('v_mul_u32_u24 %s, 1280, %s' % (v(tmp), v(ti)))
            k('v_lshl_add_u32 %s, %s, 4, %s' % (v(ao), v(tq), v(tmp)))
            k('v_lshl_add_u32 %s, %s, 3, %s' % (v(ho), v(tq), v(tmp)))
            k('s_mul_i32 s37, s23, 20')
            k('s_lshl_b32 s38, s27, 6')
            k('s_add_u32 s38, s38, s37')
            k('s_lshl_b32 s39, s28, 6')
            k('s_add_u32 s39, s39, s37')
            k('s_add_u32 s39, s39, s29')
            for p in range(NP):
                k('buffer_store_dwordx4 %s, %s, s[12:15], s38 offen offset:%d' % (v(P + 4 * p, 4), v(ao), 64 * p))
            k('buffer_store_dwordx2 %s, %s, s[12:15], s39 offen' % (v(P + 4 * NP, 2), v(ho)))
        else:
            srd_ws(k, 12, 16, 'G')
            T = WB[0][0]
            g2 = va()
            k('s_mov_b32 s37, 0x%x' % f32_bits(G1))
            k('v_mov_b32 %s, 0x%x' % (v(g2), f32_bits(G2)))
            pk = [WB[1][n] for n in range(4)]
            n = 0
            for m in range(MT):
                for p in range(NP + 1):
                    tiles = [2 * p, 2 * p + 1] if p < NP else [NT - 1]
                    xs = [acc[m][t] + r for t in tiles for r in range(4)]
                    cs = [CS + 4 * t + r for t in tiles for r in range(4)]
                    for x_, c_ in zip(xs, cs):
                        k('v_mul_f32 %s, %s, %s' % (v(x_), v(x_), v(RS + m)))
                    for x_, c_ in zip(xs, cs):
                        k('v_fma_f32 %s, -%s, %s, %s' % (v(x_), v(c_), v(MR + m), v(x_)))
                    gelu(k, xs, [T + i for i in range(len(xs))], 's37', g2)
                    Pp = pk[n % 4]
                    n += 1
                    if p < NP:
                        for r in range(4):
                            k('v_cvt_pk_bf16_f32 %s, %s, %s' % (v(Pp + r), v(xs[r]), v(xs[4 + r])))
                        k('buffer_store_dwordx4 %s, %s, s[12:15], %s offen offset:%d' % (v(Pp, 4), v(ao), s(32 + p), m * 1024))
                    else:
                        for r in range(2):
                            k('v_cvt_pk_bf16_f32 %s, %s, %s' % (v(Pp + r), v(xs[2 * r]), v(xs[2 * r + 1])))
                        k('buffer_store_dwordx2 %s, %s, s[12:15], s35 offen offset:%d' % (v(Pp, 2), v(ho), m * 1024))
        k.end()
    return fn
```

```python
from common import *

def k1_tables():
    lane = np.arange(64)
    i, q = lane % 16, lane // 16
    j = np.arange(8)
    a_ = 5 * q[:, None] + j[None, :]
    valid = (j[None, :] < 5) & (i[:, None] <= 10)
    th = 2 * np.pi * a_ * i[:, None] / 20
    f20r = np.where(valid, np.cos(th), 0)
    f20i = np.where(valid, -np.sin(th), 0)
    b_ = 8 * q[:, None] + j[None, :]
    fr, fi = [], []
    for ct in range(2):
        c = 16 * ct + i[:, None]
        th = 2 * np.pi * ((b_ * c) % 32) / 32
        fr.append(np.cos(th))
        fi.append(-np.sin(th))
    frags = [f20r, f20i, fr[0], -fi[0], fi[0], fr[1], -fi[1], -fr[1]]
    words = [pack_frag(f) for f in frags]
    sc = np.where((i == 0) | (i == 10), 1.0, 2.0) / (S * D)
    for t in range(2):
        r = np.arange(4)
        b = 8 * q[:, None] + 2 * r[None, :] + t
        th = 2 * np.pi * b * i[:, None] / 640
        words.append(f32_bits(np.cos(th) * sc[:, None]))
        words.append(f32_bits(np.sin(th) * sc[:, None]))
    return np.concatenate([w.ravel() for w in words])


def rnd_bf16(k, d, x):
    k('v_cvt_pk_bf16_f32 %s, %s, %s' % (v(d), v(x), v(x)))
    k('v_lshlrev_b32 %s, 16, %s' % (v(d), v(d)))


def emit_fft_role(k):
    va = Alloc(1)
    sx, st, so = 4, 8, 12
    sws = 16
    k('s_load_dwordx2 s[4:5], s[0:1], %d' % KA['x'])
    k('s_load_dwordx2 s[16:17], s[0:1], %d' % KA['ws'])
    srd_table(k, st, 'k1_tab', 12 * 1024)
    lane, ti, tq, xo, l16 = va(), va(), va(), va(), va()
    k('v_and_b32 %s, 63, v0' % v(lane))
    k('v_lshrrev_b32 %s, 6, v0' % v(ti))
    k('v_lshlrev_b32 %s, 4, %s' % (v(l16), v(lane)))
    k('v_readfirstlane_b32 s20, %s' % v(ti))
    k('v_and_b32 %s, 15, v0' % v(ti))
    k('v_lshrrev_b32 %s, 4, %s' % (v(tq), v(lane)))
    T = va(48, 4)
    for f in range(12):
        if f % 4 == 0 and f:
            k('s_movk_i32 s21, 0x%x' % (f * 1024))
        k('buffer_load_dwordx4 %s, %s, %s, %s offen offset:%d' % (v(T + 4 * f, 4), v(l16), s(st, 4), 's21' if f >= 4 else '0', (f % 4) * 1024))
    F20R, F20I = T, T + 4
    A = [T + 8 + 4 * n for n in range(6)]
    TC = [T + 32, T + 40]
    TS = [T + 36, T + 44]
    k('v_mul_u32_u24 %s, 320, %s' % (v(xo), v(tq)))
    k('v_lshl_add_u32 %s, %s, 2, %s' % (v(xo), v(ti), v(xo)))
    k('s_lshr_b32 s22, s2, 3')
    k('s_and_b32 s23, s2, 7')
    k('s_lshl_b32 s23, s23, 3')
    k('s_lshl_b32 s24, s20, 1')
    k('s_add_u32 s23, s23, s24')
    k('s_lshl_b32 s23, s23, 5')
    k('s_add_u32 s23, s23, s22')
    k('s_mul_i32 s24, s23, 1280')
    k('s_add_u32 s25, s24, %d' % (32 * 1280))
    k('s_mov_b32 s6, 0x%x' % (S * D * 2))
    k('s_mov_b32 s7, 0x00020000')
    X = [va(5), va(5)]
    for row in range(2):
        for m in range(5):
            k('buffer_load_dword %s, %s, %s, %s offen offset:%d' % (v(X[row] + m), v(xo), s(sx, 4), s(24 + row), 64 * m))
    srd_ws(k, so, sws, 'XB')
    b0, b1, ce = va(), va(), va()
    tmp = va()
    k('v_mul_u32_u24 %s, 80, %s' % (v(tmp), v(tq)))
    k('v_add_u32 %s, %s, %s' % (v(tmp), v(tmp), v(ti)))
    k('s_lshl_b32 s26, s20, 3')
    k('v_mov_b32 %s, s26' % v(b1))
    k('v_mad_u32_u24 %s, %s, 40, %s' % (v(b0), v(tmp), v(b1)))
    k('v_sub_u32 %s, 260, %s' % (v(tmp), v(tmp)))
    k('v_mad_u32_u24 %s, %s, 40, %s' % (v(b1), v(tmp), v(b1)))
    k('v_cmp_lt_u32 vcc, 10, %s' % v(ti))
    k('v_mov_b32 %s, 13312' % v(tmp))
    k('v_cndmask_b32 %s, %s, %s, vcc' % (v(b0), v(b0), v(tmp)))
    k('v_cndmask_b32 %s, %s, %s, vcc' % (v(b1), v(b1), v(tmp)))
    k('v_cmp_eq_u32 vcc, 0, %s' % v(ti))
    k('v_mov_b32 %s, 0xc1a00000' % v(tmp))
    k('v_cndmask_b32 %s, 0, %s, vcc' % (v(ce), v(tmp)))
    k('s_mov_b32 s27, 0x3f803f80')
    k('s_mov_b32 s28, 0x05040100')
    k('s_mov_b32 s29, 0x07060302')
    k('s_mov_b32 s30, 0xffff')
    AF = [[va(4, 4), va(4, 4)], [va(4, 4), va(4, 4)]]
    st4 = va(4)
    for row in range(2):
        for t in range(2):
            k('v_mov_b32 %s, 0' % v(AF[row][t] + 3))
    for n in range(4):
        k('v_mov_b32 %s, 0' % v(st4 + n))
    D1 = [[[va(4, 4), va(4, 4)] for t in range(2)] for row in range(2)]
    for row in range(2):
        x = X[row]
        for t in range(2):
            sel = 's28' if t == 0 else 's29'
            k('v_perm_b32 %s, %s, %s, %s' % (v(AF[row][t]), v(x + 1), v(x), sel))
            k('v_perm_b32 %s, %s, %s, %s' % (v(AF[row][t] + 1), v(x + 3), v(x + 2), sel))
            if t == 0:
                k('v_and_b32 %s, s30, %s' % (v(AF[row][t] + 2), v(x + 4)))
            else:
                k('v_lshrrev_b32 %s, 16, %s' % (v(AF[row][t] + 2), v(x + 4)))
        for m in range(5):
            k('v_dot2_f32_bf16 %s, %s, s27, %s' % (v(st4 + 2 * row), v(x + m), v(st4 + 2 * row)))
            k('v_dot2_f32_bf16 %s, %s, %s, %s' % (v(st4 + 2 * row + 1), v(x + m), v(x + m), v(st4 + 2 * row + 1)))
    for row in range(2):
        for t in range(2):
            k('%s %s, %s, %s, 0' % (MFMA, v(D1[row][t][0], 4), v(AF[row][t], 4), v(F20R, 4)))
            k('%s %s, %s, %s, 0' % (MFMA, v(D1[row][t][1], 4), v(AF[row][t], 4), v(F20I, 4)))
    s0, q0, s1, q1 = st4, st4 + 1, st4 + 2, st4 + 3
    k('v_permlane32_swap_b32 %s, %s' % (v(s0), v(q0)))
    k('v_permlane32_swap_b32 %s, %s' % (v(s1), v(q1)))
    k('v_add_f32 %s, %s, %s' % (v(s0), v(s0), v(q0)))
    k('v_add_f32 %s, %s, %s' % (v(s1), v(s1), v(q1)))
    k('v_permlane16_swap_b32 %s, %s' % (v(s0), v(s1)))
    k('v_add_f32 %s, %s, %s' % (v(s0), v(s0), v(s1)))
    for m in ('quad_perm:[1,0,3,2]', 'quad_perm:[2,3,0,1]', 'row_half_mirror', 'row_mirror'):
        k('v_add_f32_dpp %s, %s, %s %s row_mask:0xf bank_mask:0xf' % (v(s0), v(s0), v(s0), m))
    k('v_mov_b32 %s, %s' % (v(q0), v(s0)))
    k('v_permlane32_swap_b32 %s, %s' % (v(s0), v(q0)))
    k('v_mul_f32 %s, 0x3acccccd, %s' % (v(s0), v(s0)))
    k('v_mul_f32 %s, 0x3acccccd, %s' % (v(q0), v(q0)))
    k('v_fma_f32 %s, -%s, %s, %s' % (v(q0), v(s0), v(s0), v(q0)))
    k('v_max_f32 %s, 0, %s' % (v(q0), v(q0)))
    rnd_bf16(k, q0, q0)
    rnd_bf16(k, s0, s0)
    k('v_add_f32 %s, 0x3727c5ac, %s' % (v(q0), v(q0)))
    rnd_bf16(k, q0, q0)
    k('v_sqrt_f32 %s, %s' % (v(q0), v(q0)))
    rnd_bf16(k, q0, q0)
    k('v_rcp_f32 %s, %s' % (v(q0), v(q0)))
    k('v_mul_f32 %s, %s, %s' % (v(s0), v(s0), v(q0)))
    k('v_readlane_b32 s32, %s, 0' % v(q0))
    k('v_readlane_b32 s34, %s, 16' % v(q0))
    k('v_readlane_b32 s36, %s, 0' % v(s0))
    k('v_readlane_b32 s37, %s, 16' % v(s0))
    add = [va(2), va(2)]
    for row in range(2):
        k('v_mul_f32 %s, %s, %s' % (v(add[row]), s(36 + row), v(ce)))
    BR = [va(4, 4), va(4, 4)]
    BI = [va(4, 4), va(4, 4)]
    t1, t2 = va(4), va(4)
    for row in range(2):
        sr = s(32 + 2 * row, 2)
        for t in range(2):
            dr, di = D1[row][t]
            for h in (0, 2):
                k('v_pk_fma_f32 %s, %s, %s, %s op_sel_hi:[1,0,0]' % (v(dr + h, 2), v(dr + h, 2), sr, v(add[row], 2)))
                k('v_pk_mul_f32 %s, %s, %s op_sel_hi:[1,0]' % (v(di + h, 2), v(di + h, 2), sr))
            for h in (0, 2):
                k('v_pk_mul_f32 %s, %s, %s' % (v(t1 + h, 2), v(di + h, 2), v(TS[t] + h, 2)))
                k('v_pk_mul_f32 %s, %s, %s' % (v(t2 + h, 2), v(dr + h, 2), v(TS[t] + h, 2)))
            for h in (0, 2):
                k('v_pk_fma_f32 %s, %s, %s, %s' % (v(dr + h, 2), v(dr + h, 2), v(TC[t] + h, 2), v(t1 + h, 2)))
                k('v_pk_fma_f32 %s, %s, %s, %s neg_lo:[0,0,1] neg_hi:[0,0,1]' % (v(di + h, 2), v(di + h, 2), v(TC[t] + h, 2), v(t2 + h, 2)))
        for r in range(4):
            k('v_cvt_pk_bf16_f32 %s, %s, %s' % (v(BR[row] + r), v(D1[row][0][0] + r), v(D1[row][1][0] + r)))
            k('v_cvt_pk_bf16_f32 %s, %s, %s' % (v(BI[row] + r), v(D1[row][0][1] + r), v(D1[row][1][1] + r)))
    D2 = [[[va(4, 4), va(4, 4)] for ct in range(2)] for row in range(2)]
    for row in range(2):
        for ct in range(2):
            ar = (A[0], A[1], A[2], A[0]) if ct == 0 else (A[3], A[4], A[4], A[5])
            o_r, o_i = D2[row][ct]
            k('%s %s, %s, %s, 0' % (MFMA, v(o_r, 4), v(ar[0], 4), v(BR[row], 4)))
            k('%s %s, %s, %s, 0' % (MFMA, v(o_i, 4), v(ar[2], 4), v(BR[row], 4)))
            k('%s %s, %s, %s, %s' % (MFMA, v(o_r, 4), v(ar[1], 4), v(BI[row], 4), v(o_r, 4)))
            k('%s %s, %s, %s, %s' % (MFMA, v(o_i, 4), v(ar[3], 4), v(BI[row], 4), v(o_i, 4)))
    ra, ga, ga2 = va(), va(), va()
    k('v_and_b32 %s, 1, v0' % v(tmp))
    k('v_mul_u32_u24 %s, 20, v0' % v(ra))
    k('v_lshlrev_b32 %s, 2, %s' % (v(tmp), v(tmp)))
    k('v_sub_u32 %s, %s, %s' % (v(ra), v(ra), v(tmp)))
    k('v_lshlrev_b32 %s, 4, v0' % v(ga))
    k('v_cmp_gt_u32 vcc, 130, v0')
    k('v_mov_b32 %s, 0x40000000' % v(tmp))
    k('v_cndmask_b32 %s, %s, %s, vcc' % (v(ga2), v(tmp), v(ga)))
    k('s_mul_i32 s40, s2, %d' % BLK)
    k('s_add_u32 s41, s40, 4096')
    k('s_add_u32 s42, s40, 8192')
    P = va(16, 2)
    for ct in range(2):
        for r in range(4):
            for row in range(2):
                k('v_cvt_pk_bf16_f32 %s, %s, %s' % (v(P + 8 * ct + 2 * r + row), v(D2[row][ct][0] + r), v(D2[row][ct][1] + r)))
            off = 800 * r if ct == 0 else 800 * (3 - r)
            k('ds_write_b64 %s, %s offset:%d' % (v(b0 if ct == 0 else b1), v(P + 8 * ct + 2 * r, 2), off))
    k.barrier()
    R = va(12, 4)
    for r in range(3):
        if r == 0:
            k('ds_read2_b64 %s, %s offset0:0 offset1:1' % (v(R, 4), v(ra)))
        else:
            k('v_add_u32 %s, %d, %s' % (v(ra), 5120, v(ra)))
            k('ds_read2_b64 %s, %s offset0:0 offset1:1' % (v(R + 4 * r, 4), v(ra)))
    for r in range(3):
        k('buffer_store_dwordx4 %s, %s, %s, %s offen' % (v(R + 4 * r, 4), v(ga if r < 2 else ga2), s(so, 4), s(40 + r)))
    k.end()


def emit_wt_role(k, wg0):
    va = Alloc(1)
    k('s_load_dwordx2 s[4:5], s[0:1], %d' % KA['wr'])
    k('s_load_dwordx2 s[8:9], s[0:1], %d' % KA['wi'])
    k('s_load_dwordx2 s[16:17], s[0:1], %d' % KA['ws'])
    k('s_sub_u32 s3, s2, %d' % wg0)
    k('s_lshr_b32 s20, s3, 2')
    k('s_and_b32 s21, s3, 3')
    k('s_lshl_b32 s21, s21, 9')
    k('s_add_u32 s20, s20, s21')
    k('s_mul_i32 s20, s20, 642')
    for j in range(1, 4):
        k('s_add_u32 %s, s20, %d' % (s(20 + j), j * 64 * 642))
    k('s_mul_i32 s24, s3, %d' % BLK)
    lo, so, idx, tmp, big = va(3), va(3), va(), va(), va()
    k('v_mov_b32 %s, 0x40000000' % v(big))
    for r in range(3):
        k('v_add_u32 %s, %d, v0' % (v(idx), 256 * r))
        k('v_subrev_u32 %s, 321, %s' % (v(tmp), v(idx)))
        k('v_cmp_gt_u32 vcc, 321, %s' % v(idx))
        k('v_cndmask_b32 %s, %s, %s, vcc' % (v(tmp), v(tmp), v(idx)))
        k('v_lshlrev_b32 %s, 1, %s' % (v(lo + r), v(tmp)))
        k('v_lshlrev_b32 %s, 5, %s' % (v(so + r), v(tmp)))
        k('v_add_u32 %s, 0x%x, %s' % (v(tmp), 256 * 642, v(lo + r)))
        k('v_cndmask_b32 %s, %s, %s, vcc' % (v(lo + r), v(tmp), v(lo + r)))
        k('v_add_u32 %s, 16, %s' % (v(tmp), v(so + r)))
        k('v_cndmask_b32 %s, %s, %s, vcc' % (v(so + r), v(tmp), v(so + r)))
        if r == 2:
            k('v_cmp_gt_u32 vcc, 642, %s' % v(idx))
            k('v_cndmask_b32 %s, %s, %s, vcc' % (v(lo + r), v(big), v(lo + r)))
            k('v_cndmask_b32 %s, %s, %s, vcc' % (v(so + r), v(big), v(so + r)))
    k('s_mov_b32 s6, 0x%x' % (S * DF * 2))
    k('s_mov_b32 s7, 0x00020000')
    k('s_mov_b32 s10, 0x%x' % (S * DF * 2))
    k('s_mov_b32 s11, 0x00020000')
    R = va(12, 4)
    R2 = va(12, 4)
    for r in range(3):
        for j in range(4):
            k('buffer_load_ushort %s, %s, s[4:7], %s offen' % (v(R + 4 * r + j), v(lo + r), s(20 + j)))
            k('buffer_load_ushort %s, %s, s[8:11], %s offen' % (v(R2 + 4 * r + j), v(lo + r), s(20 + j)))
    srd_ws(k, 12, 16, 'WB')
    for r in range(3):
        for j in range(4):
            k('v_lshl_or_b32 %s, %s, 16, %s' % (v(R + 4 * r + j), v(R2 + 4 * r + j), v(R + 4 * r + j)))
        k('buffer_store_dwordx4 %s, %s, s[12:15], s24 offen' % (v(R + 4 * r, 4), v(so + r)))
    k.end()
```

```python
from common import *

def cs_frag(th):
    re = np.stack([np.cos(th), np.sin(th)], -1).reshape(64, 8)
    im = np.stack([-np.sin(th), np.cos(th)], -1).reshape(64, 8)
    return pack_frag(re), pack_frag(im)

def k2_tables():
    lane = np.arange(64)
    i, q = lane % 16, lane // 16
    jj = np.arange(4)
    words = []
    for tp in range(2):
        for t in range(2):
            f2 = 16 * tp + i[:, None]
            n2 = 16 * t + 4 * q[:, None] + jj[None, :]
            re, im = cs_frag(2 * np.pi * ((f2 * n2) % 32) / 32)
            words += [re, im]
    for w in range(4):
        f1 = 16 * w + i[:, None]
        for ks in range(4):
            n1 = 16 * ks + 4 * q[:, None] + jj[None, :]
            re, im = cs_frag(2 * np.pi * ((f1 * n1) % 64) / 64)
            words += [re, im]
        for t in range(2):
            n2 = 16 * t + 4 * q[:, None] + jj[None, :]
            th = 2 * np.pi * (n2 * f1) / 2048
            words += [f32_bits(np.cos(th)), f32_bits(np.sin(th))]
    return np.concatenate([w.ravel() for w in words])

K2_LDS = 8192 + 32 * 272

def twiddle(k, dr, di, tc, ts, t1, t2):
    for h in (0, 2):
        k('v_pk_mul_f32 %s, %s, %s' % (v(t1 + h, 2), v(di + h, 2), v(ts + h, 2)))
        k('v_pk_mul_f32 %s, %s, %s' % (v(t2 + h, 2), v(dr + h, 2), v(ts + h, 2)))
    for h in (0, 2):
        k('v_pk_fma_f32 %s, %s, %s, %s' % (v(dr + h, 2), v(dr + h, 2), v(tc + h, 2), v(t1 + h, 2)))
        k('v_pk_fma_f32 %s, %s, %s, %s neg_lo:[0,0,1] neg_hi:[0,0,1]' % (v(di + h, 2), v(di + h, 2), v(tc + h, 2), v(t2 + h, 2)))

def emit_col_role(k, wg0):
    va = Alloc(1)
    done = k.newlabel('done')
    k('s_load_dwordx2 s[16:17], s[0:1], %d' % KA['ws'])
    k('s_and_b32 s20, s2, 7')
    k('s_lshr_b32 s21, s2, 5')
    k('s_lshl_b32 s21, s21, 3')
    k('s_add_u32 s20, s20, s21')
    k('s_lshl_b32 s20, s20, 2')
    k('s_bfe_u32 s21, s2, 0x20003')
    k('s_add_u32 s20, s20, s21')
    k('s_cmp_gt_u32 s20, 320')
    k('s_cbranch_scc1 %s' % done)
    st0 = k.save()
    srd_table(k, 8, 'k2_tab', 56 * 1024)
    lane, ti, tq, l16, tmp, xo, wo = [va() for _ in range(7)]
    k('v_and_b32 %s, 63, v0' % v(lane))
    k('v_lshrrev_b32 %s, 6, v0' % v(ti))
    k('v_lshlrev_b32 %s, 4, %s' % (v(l16), v(lane)))
    k('v_readfirstlane_b32 s21, %s' % v(ti))
    k('v_and_b32 %s, 15, v0' % v(ti))
    k('v_lshrrev_b32 %s, 4, %s' % (v(tq), v(lane)))
    k('v_lshrrev_b32 %s, 1, %s' % (v(tmp), v(tq)))
    k('v_lshl_add_u32 %s, %s, 3, %s' % (v(xo), v(ti), v(tmp)))
    k('v_lshl_add_u32 %s, %s, 2, %s' % (v(wo), v(ti), v(tmp)))
    k('v_mul_u32_u24 %s, %d, %s' % (v(xo), BLK, v(xo)))
    k('v_mul_u32_u24 %s, %d, %s' % (v(wo), BLK, v(wo)))
    k('v_and_b32 %s, 16, v0' % v(tmp))
    k('v_add_u32 %s, %s, %s' % (v(xo), v(xo), v(tmp)))
    k('v_add_u32 %s, %s, %s' % (v(wo), v(wo), v(tmp)))
    k('s_lshl_b32 s22, s20, 5')
    k('s_lshr_b32 s23, s21, 1')
    k('s_lshl_b32 s23, s23, 7')
    k('s_and_b32 s24, s21, 1')
    k('s_lshl_b32 s24, s24, 2')
    k('s_add_u32 s23, s23, s24')
    k('s_mul_i32 s23, s23, %d' % BLK)
    k('s_add_u32 s23, s23, s22')
    k('s_add_u32 s24, s23, %d' % (2 * BLK))
    k('s_mul_i32 s25, s21, %d' % (64 * BLK))
    k('s_add_u32 s25, s25, s22')
    k('s_add_u32 s26, s25, %d' % (2 * BLK))
    k('s_lshl_b32 s27, s21, 11')
    k('s_mul_i32 s28, s21, %d' % (12 * 1024))
    k('s_add_u32 s28, s28, %d' % (8 * 1024))
    k('s_add_u32 s29, s28, 4096')
    k('s_add_u32 s30, s28, 8192')
    k('s_movk_i32 s31, 4096')
    srd_ws(k, 4, 16, 'XB')
    srd_ws(k, 12, 16, 'WB')
    k('s_mov_b32 m0, s27')
    k('buffer_load_dwordx4 %s, s[4:7], s23 offen lds' % v(xo))
    k('s_add_u32 m0, s27, 1024')
    tok = k.op('buffer_load_dwordx4 %s, s[4:7], s24 offen lds' % v(xo))
    B = va(32, 4)
    TW = va(16, 4)
    G = va(32, 4)
    Wv = va(8, 4)
    for f in range(8):
        k('buffer_load_dwordx4 %s, %s, s[8:11], %s offen offset:%d' % (v(B + 4 * f, 4), v(l16), s(28 + f // 4), (f % 4) * 1024))
    for f in range(4):
        k('buffer_load_dwordx4 %s, %s, s[8:11], s30 offen offset:%d' % (v(TW + 4 * f, 4), v(l16), f * 1024))
    for f in range(8):
        k('buffer_load_dwordx4 %s, %s, s[8:11], %s offen offset:%d' % (v(G + 4 * f, 4), v(l16), 's31' if f >= 4 else '0', (f % 4) * 1024))
    for t in range(2):
        k('buffer_load_dwordx4 %s, %s, s[12:15], %s offen' % (v(Wv + 4 * t, 4), v(wo), s(25 + t)))
    B1 = [B + 8 * ks for ks in range(4)]
    B2 = [B + 8 * ks + 4 for ks in range(4)]
    TC = [TW, TW + 8]
    TS = [TW + 4, TW + 12]
    Gr = lambda tp, t: G + 8 * (2 * tp + t)
    Gi = lambda tp, t: G + 8 * (2 * tp + t) + 4
    wa, ra, za = va(), va(), va()
    k('v_mul_u32_u24 %s, %d, %s' % (v(wa), 4 * 272, v(tq)))
    k('v_lshl_add_u32 %s, %s, 2, %s' % (v(wa), v(ti), v(wa)))
    k('s_lshl_b32 s32, s21, 6')
    k('s_add_u32 s32, s32, 8192')
    k('v_add_u32 %s, s32, %s' % (v(wa), v(wa)))
    k('v_mul_u32_u24 %s, 272, %s' % (v(ra), v(ti)))
    k('v_lshl_add_u32 %s, %s, 4, %s' % (v(ra), v(tq), v(ra)))
    k('v_lshlrev_b32 %s, 7, %s' % (v(za), v(ti)))
    k('v_lshl_add_u32 %s, %s, 4, %s' % (v(za), v(tq), v(za)))
    k('s_lshl_b32 s33, s20, 13')
    k('s_add_u32 s33, s33, s27')
    srd_ws(k, 4, 16, 'Z')
    k('s_mov_b32 s34, 0xffff0000')
    k.barrier(vm=tok)
    U = va(32, 4)
    for f in range(8):
        k('ds_read_b128 %s, %s offset:%d' % (v(U + 4 * f, 4), v(l16), f * 1024))
    D1 = [[va(4, 4), va(4, 4)] for t in range(2)]
    def big(Dst, Af):
        for t in range(2):
            for ks in range(4):
                for c, Bc in enumerate((B1, B2)):
                    k('%s %s, %s, %s, %s' % (MFMA, v(Dst[t][c], 4), v(Af + 16 * t + 4 * ks, 4), v(Bc[ks], 4), v(Dst[t][c], 4) if ks else '0'))
    big(D1, U)
    WR, WI = va(8, 2), va(8, 2)
    for n in range(8):
        k('v_lshlrev_b32 %s, 16, %s' % (v(WR + n), v(Wv + n)))
        k('v_and_b32 %s, s34, %s' % (v(WI + n), v(Wv + n)))
    t1, t2 = va(4, 2), va(4, 2)
    Bf = [va(4, 4), va(4, 4)]
    for t in range(2):
        twiddle(k, D1[t][0], D1[t][1], TC[t], TS[t], t1, t2)
        for r in range(4):
            k('v_cvt_pk_bf16_f32 %s, %s, %s' % (v(Bf[t] + r), v(D1[t][0] + r), v(D1[t][1] + r)))
    D2 = [[va(4, 4), va(4, 4)] for t in range(2)]
    def small(Dst, Bsrc):
        for tp in range(2):
            for t in range(2):
                k('%s %s, %s, %s, %s' % (MFMA, v(Dst[tp][0], 4), v(Gr(tp, t), 4), v(Bsrc[t], 4), v(Dst[tp][0], 4) if t else '0'))
                k('%s %s, %s, %s, %s' % (MFMA, v(Dst[tp][1], 4), v(Gi(tp, t), 4), v(Bsrc[t], 4), v(Dst[tp][1], 4) if t else '0'))
    small(D2, Bf)
    Bf2 = [va(4, 4), va(4, 4)]
    for t in range(2):
        xr, xi = D2[t]
        for h in (0, 2):
            k('v_pk_mul_f32 %s, %s, %s' % (v(t1 + h, 2), v(xi + h, 2), v(WI + 4 * t + h, 2)))
            k('v_pk_mul_f32 %s, %s, %s' % (v(t2 + h, 2), v(xi + h, 2), v(WR + 4 * t + h, 2)))
        for h in (0, 2):
            k('v_pk_fma_f32 %s, %s, %s, %s neg_lo:[0,1,1] neg_hi:[0,1,1]' % (v(xi + h, 2), v(xr + h, 2), v(WI + 4 * t + h, 2), v(t2 + h, 2)))
            k('v_pk_fma_f32 %s, %s, %s, %s neg_lo:[0,0,1] neg_hi:[0,0,1]' % (v(xr + h, 2), v(xr + h, 2), v(WR + 4 * t + h, 2), v(t1 + h, 2)))
        for r in range(4):
            k('v_cvt_pk_bf16_f32 %s, %s, %s' % (v(Bf2[t] + r), v(xr + r), v(xi + r)))
    small(D1, Bf2)
    for t in range(2):
        twiddle(k, D1[t][0], D1[t][1], TC[t], TS[t], t1, t2)
        for r in range(4):
            k('v_cvt_pk_bf16_f32 %s, %s, %s' % (v(Bf[t] + r), v(D1[t][0] + r), v(D1[t][1] + r)))
            k('ds_write_b32 %s, %s offset:%d' % (v(wa), v(Bf[t] + r), (16 * t + r) * 272))
    k.barrier()
    for t in range(2):
        for ks in range(4):
            k('ds_read_b128 %s, %s offset:%d' % (v(U + 16 * t + 4 * ks, 4), v(ra), 8192 + t * 4352 + ks * 64))
    big(D2, U)
    for t in range(2):
        for r in range(4):
            k('v_cvt_pk_bf16_f32 %s, %s, %s' % (v(Bf2[t] + r), v(D2[t][0] + r), v(D2[t][1] + r)))
        k('buffer_store_dwordx4 %s, %s, s[4:7], s33 offen offset:%d' % (v(Bf2[t], 4), v(za), t * 64))
    k.label(done)
    k.end()
```

```python
from common import *
from k1 import rnd_bf16
from k2 import twiddle
from gemm import gelu, G1, G2

def k3_tables():
    lane = np.arange(64)
    i, q = lane % 16, lane // 16
    jj = np.arange(4)
    words = []
    def fr(x0, x1):
        return pack_frag(np.stack([x0, x1], -1).reshape(64, 8))
    for ks in range(2):
        c = (4 * q[:, None] + jj[None, :]) if ks == 0 else (19 + 4 * q[:, None] - jj[None, :])
        sg = 1 if ks == 0 else -1
        for bt in range(2):
            b = 2 * i[:, None] + bt
            th = 2 * np.pi * ((b * c) % 32) / 32
            words += [fr(np.cos(th), sg * np.sin(th)), fr(-np.sin(th), sg * np.cos(th))]
    e = 4 * q[:, None] + jj[None, :]
    for bt in range(2):
        th = 2 * np.pi * ((2 * i[:, None] + bt) * e) / 640
        words += [f32_bits(np.cos(th)), f32_bits(np.sin(th))]
    for at in range(2):
        a_ = 5 * (i // 4) + (i % 4 if at == 0 else 4)
        ok = (e <= 10) & ((at == 0) | (i % 4 == 0))[:, None]
        th = 2 * np.pi * ((a_[:, None] * e) % 20) / 20
        words.append(fr(np.where(ok, np.cos(th), 0), np.where(ok, np.sin(th), 0)))
    return np.concatenate([w.ravel() for w in words])

ZT, TAB = 0, 48 * 1024
AT = TAB + 16 * 1024
KBS = 2112
K3_LDS = AT + 20 * KBS
NPRE = 7

def emit_k3(k, wg0):
    va = Alloc(1, 172)
    k('s_load_dwordx2 s[16:17], s[0:1], %d' % KA['ws'])
    k('s_load_dwordx2 s[12:13], s[0:1], %d' % KA['x'])
    srd_table(k, 8, 'k3_tab', 14 * 1024)
    ti, tq, l16, zo, tmp, xo = [va() for _ in range(6)]
    k('v_lshrrev_b32 %s, 6, v0' % v(ti))
    k('v_and_b32 %s, 63, v0' % v(l16))
    k('v_readfirstlane_b32 s20, %s' % v(ti))
    k('v_lshrrev_b32 %s, 4, %s' % (v(tq), v(l16)))
    k('v_and_b32 %s, 15, v0' % v(ti))
    k('v_bfe_u32 %s, v0, 4, 3' % v(tmp))
    k('v_xor_b32 %s, %s, v0' % (v(tmp), v(tmp)))
    k('v_and_b32 %s, 7, %s' % (v(tmp), v(tmp)))
    k('v_lshrrev_b32 %s, 3, %s' % (v(zo), v(l16)))
    k('v_lshlrev_b32 %s, 13, %s' % (v(zo), v(zo)))
    k('v_lshl_add_u32 %s, %s, 4, %s' % (v(zo), v(tmp), v(zo)))
    k('v_lshlrev_b32 %s, 4, %s' % (v(l16), v(l16)))
    k('s_lshr_b32 s21, s2, 5')
    k('s_lshl_b32 s21, s21, 3')
    k('s_and_b32 s22, s2, 7')
    k('s_add_u32 s21, s21, s22')
    k('s_bfe_u32 s22, s2, 0x20003')
    k('s_lshl_b32 s23, s21, 7')
    k('s_lshl_b32 s24, s20, 16')
    k('s_add_u32 s23, s23, s24')
    k('s_lshl_b32 s24, s20, 10')
    k('s_lshl_b32 s25, s20, 11')
    srd_ws(k, 4, 16, 'Z')
    for m in range(6):
        k('s_add_u32 m0, s24, %d' % (ZT + m * 8192))
        k('buffer_load_dwordx4 %s, s[4:7], s23 offen lds' % v(zo))
        if m < 5:
            k('s_add_u32 s23, s23, %d' % (64 * 8192))
    k('s_add_u32 m0, s25, %d' % TAB)
    k('buffer_load_dwordx4 %s, s[8:11], s25 offen lds' % v(l16))
    tok = k.op('buffer_load_dwordx4 %s, s[8:11], s25 offen offset:1024 lds' % v(l16))
    k('v_mul_u32_u24 %s, 320, %s' % (v(xo), v(tq)))
    k('v_lshl_add_u32 %s, %s, 2, %s' % (v(xo), v(ti), v(xo)))
    k('s_lshl_b32 s26, s21, 3')
    k('s_add_u32 s26, s26, s20')
    k('s_mul_i32 s27, s26, 5120')
    k('s_add_u32 s28, s27, 2560')
    k('s_mov_b32 s14, 0x%x' % (S * D * 2))
    k('s_mov_b32 s15, 0x00020000')
    X = [va(5) for r in range(4)]
    for r in range(4):
        for m in range(5):
            k('buffer_load_dword %s, %s, s[12:15], %s offen offset:%d' % (v(X[r] + m), v(xo), s(27 + r // 2), (r % 2) * 1280 + 64 * m))
    k('s_and_b32 s29, s20, 3')
    k('s_lshr_b32 s30, s20, 2')
    k('s_lshl_b32 s31, s22, 1')
    k('s_add_u32 s31, s31, s30')
    k('s_mul_i32 s31, s31, 100')
    k('s_and_b32 s33, s29, 1')
    k('s_add_u32 s32, s31, s33')
    k('s_add_u32 s32, s32, 8')
    k('s_lshl_b32 s32, s32, 10')
    k('s_lshl_b32 s33, s29, 1')
    k('s_add_u32 s31, s31, s33')
    k('s_lshl_b32 s31, s31, 10')
    srd_ws(k, 4, 16, 'W1F')
    Wr = {}
    def wload(ks, regs):
        Wr[ks] = regs
        k('buffer_load_dwordx4 %s, %s, s[4:7], s31 offen' % (regs[0], v(l16)))
        k('buffer_load_dwordx4 %s, %s, s[4:7], s31 offen offset:1024' % (regs[1], v(l16)))
        k('buffer_load_dwordx4 %s, %s, s[4:7], s32 offen' % (regs[2], v(l16)))
        if ks < 9:
            k('s_add_u32 s31, s31, 10240')
            k('s_add_u32 s32, s32, 10240')
    for ks in range(NPRE):
        wload(ks, [a(12 * ks + 4 * n, 4) for n in range(3)])
    TB = va(56, 4)
    ZF = va(32, 4)
    TT = [va(16, 4), va(16, 4)]
    za = TT[0]
    kk = xo
    k('v_mul_u32_u24 %s, 80, %s' % (v(kk), v(tq)))
    k('v_add_u32 %s, %s, %s' % (v(kk), v(kk), v(ti)))
    for ks in range(2):
        if ks:
            k('v_sub_u32 %s, 260, %s' % (v(kk), v(kk)))
        for jj in range(4):
            d = za + 4 * ks + jj
            k('v_add_u32 %s, %d, %s' % (v(d), 20 * jj, v(kk)))
            k('v_bfe_u32 %s, %s, 1, 3' % (v(tmp), v(d)))
            k('v_xor_b32 %s, s20, %s' % (v(tmp), v(tmp)))
            k('v_lshlrev_b32 %s, 7, %s' % (v(d), v(d)))
            k('v_lshl_add_u32 %s, %s, 4, %s' % (v(d), v(tmp), v(d)))
    wa = va(4)
    k('v_mul_u32_u24 %s, %d, %s' % (v(wa), 5 * KBS, v(tq)))
    k('v_lshrrev_b32 %s, 2, %s' % (v(tmp), v(ti)))
    k('v_mul_u32_u24 %s, 272, %s' % (v(tmp), v(tmp)))
    k('v_add_u32 %s, %s, %s' % (v(wa), v(wa), v(tmp)))
    k('v_and_b32 %s, 3, %s' % (v(tmp), v(ti)))
    k('v_lshl_add_u32 %s, %s, 2, %s' % (v(wa), v(tmp), v(wa)))
    k('s_lshl_b32 s34, s30, 10')
    k('s_lshl_b32 s35, s29, 6')
    k('s_add_u32 s34, s34, s35')
    k('s_add_u32 s34, s34, %d' % AT)
    k('v_add_u32 %s, s34, %s' % (v(wa), v(wa)))
    for r in range(1, 4):
        k('v_xor_b32 %s, %d, %s' % (v(wa + r), 16 * r, v(wa)))
    k('s_mov_b32 s36, 0xffff0000')
    k('s_mov_b32 s37, 0x3f803f80')
    st = va(8)
    for n in range(8):
        k('v_mov_b32 %s, 0' % v(st + n))
    k.barrier(vm=tok)
    for n in range(8):
        k('ds_read_b128 %s, %s offset:%d' % (v(ZF + 4 * n, 4), v(za + n), ZT))
    for f in range(14):
        k('ds_read_b128 %s, %s offset:%d' % (v(TB + 4 * f, 4), v(l16), TAB + 1024 * f))
    for ks in range(2):
        for a_ in range(4):
            for b_ in range(a_ + 1, 4):
                k('v_swap_b32 %s, %s' % (v(ZF + 16 * ks + 4 * a_ + b_), v(ZF + 16 * ks + 4 * b_ + a_)))
    SA = lambda ks, bt, c: TB + 4 * (4 * ks + 2 * bt + c)
    TC = lambda bt: TB + 32 + 8 * bt
    TS = lambda bt: TB + 36 + 8 * bt
    SB = lambda at: TB + 48 + 4 * at
    t1, t2 = va(4, 2), va(4, 2)
    def stepA(r):
        T = TT[r % 2]
        for ks in range(2):
            for bt in range(2):
                for c in range(2):
                    d = T + 8 * bt + 4 * c
                    k('%s %s, %s, %s, %s' % (MFMA, v(d, 4), v(ZF + 16 * ks + 4 * r, 4), v(SA(ks, bt, c), 4), v(d, 4) if ks else '0'))
    def stepB(r):
        T = TT[r % 2]
        for bt in range(2):
            twiddle(k, T + 8 * bt, T + 8 * bt + 4, TC(bt), TS(bt), t1, t2)
            for n in range(4):
                k('v_cvt_pk_bf16_f32 %s, %s, %s' % (v(ZF + 16 * bt + 4 * r + n), v(T + 8 * bt + n), v(T + 8 * bt + 4 + n)))
            for m in range(5):
                k(('v_and_b32 %s, s36, %s' if bt else 'v_lshlrev_b32 %s, 16, %s') % (v(T + 8 * bt + m), v(X[r] + m)))
            for at in range(2):
                d = T + 8 * bt + 4 * at
                k('%s %s, %s, %s, %s' % (MFMA, v(d, 4), v(SB(at), 4), v(ZF + 16 * bt + 4 * r, 4), v(d, 4)))
    def pack(r):
        T = TT[r % 2]
        for m in range(5):
            k('v_cvt_pk_bf16_f32 %s, %s, %s' % (v(X[r] + m), v(T + m), v(T + 8 + m)))
    def dots(r):
        for m in range(5):
            k('v_dot2_f32_bf16 %s, %s, s37, %s' % (v(st + r), v(X[r] + m), v(st + r)))
            k('v_dot2_f32_bf16 %s, %s, %s, %s' % (v(st + 4 + r), v(X[r] + m), v(X[r] + m), v(st + 4 + r)))
    stepA(0); stepA(1); stepB(0); stepB(1)
    pack(0); stepA(2); pack(1); stepA(3)
    dots(0); dots(1)
    for ks in range(NPRE, 9):
        wload(ks, [v(TB + 12 * (ks - NPRE) + 4 * n, 4) for n in range(3)])
    stepB(2); stepB(3)
    wload(9, [v(TB + 24 + 4 * n, 4) for n in range(3)])
    pack(2); pack(3); dots(2); dots(3)
    for b in (st, st + 4):
        k('v_permlane32_swap_b32 %s, %s' % (v(b), v(b + 1)))
        k('v_permlane32_swap_b32 %s, %s' % (v(b + 2), v(b + 3)))
    for b in (st, st + 4):
        k('v_add_f32 %s, %s, %s' % (v(b), v(b), v(b + 1)))
        k('v_add_f32 %s, %s, %s' % (v(b + 2), v(b + 2), v(b + 3)))
    for b in (st, st + 4):
        k('v_permlane16_swap_b32 %s, %s' % (v(b), v(b + 2)))
    for b in (st, st + 4):
        k('v_add_f32 %s, %s, %s' % (v(b), v(b), v(b + 2)))
    for m in ('quad_perm:[1,0,3,2]', 'quad_perm:[2,3,0,1]', 'row_half_mirror', 'row_mirror'):
        for b in (st, st + 4):
            k('v_add_f32_dpp %s, %s, %s %s row_mask:0xf bank_mask:0xf' % (v(b), v(b), v(b), m))
    mean, var, mb, r1, b1, v2, m2 = st, st + 4, st + 1, st + 2, st + 3, st + 5, st + 6
    k('v_mul_f32 %s, 0x3acccccd, %s' % (v(mean), v(mean)))
    k('v_mul_f32 %s, 0x3acccccd, %s' % (v(var), v(var)))
    k('v_fma_f32 %s, -%s, %s, %s' % (v(var), v(mean), v(mean), v(var)))
    k('v_max_f32 %s, 0, %s' % (v(var), v(var)))
    rnd_bf16(k, r1, var)
    rnd_bf16(k, mb, mean)
    k('v_add_f32 %s, 0x3727c5ac, %s' % (v(r1), v(r1)))
    rnd_bf16(k, r1, r1)
    k('v_sqrt_f32 %s, %s' % (v(r1), v(r1)))
    rnd_bf16(k, r1, r1)
    k('v_rcp_f32 %s, %s' % (v(r1), v(r1)))
    k('v_sub_f32 %s, %s, %s' % (v(m2), v(mean), v(mb)))
    k('v_mul_f32 %s, %s, %s' % (v(v2), v(var), v(r1)))
    k('v_mul_f32 %s, %s, %s' % (v(m2), v(m2), v(r1)))
    k('v_mul_f32 %s, %s, %s' % (v(v2), v(v2), v(r1)))
    k('v_mul_f32 %s, -1.0, %s' % (v(b1), v(mb)))
    rnd_bf16(k, v2, v2)
    rnd_bf16(k, m2, m2)
    k('v_add_f32 %s, 0x3727c5ac, %s' % (v(v2), v(v2)))
    k('v_mul_f32 %s, %s, %s' % (v(b1), v(b1), v(r1)))
    rnd_bf16(k, v2, v2)
    k('v_sqrt_f32 %s, %s' % (v(v2), v(v2)))
    k('v_sub_f32 %s, %s, %s' % (v(m2), v(b1), v(m2)))
    rnd_bf16(k, v2, v2)
    k('v_rcp_f32 %s, %s' % (v(v2), v(v2)))
    k('s_lshr_b32 s38, s22, 1')
    k('s_lshl_b32 s39, s22, 1')
    k('s_or_b32 s38, s38, s39')
    k('s_and_b32 s38, s38, 3')
    k('s_lshl_b32 s38, s38, 4')
    k('v_mul_f32 %s, %s, %s' % (v(m2), v(m2), v(v2)))
    k('v_mul_f32 %s, %s, %s' % (v(v2), v(v2), v(r1)))
    LN = [0, 32, 16, 48]
    for r in range(4):
        k('v_readlane_b32 %s, %s, %d' % (s(40 + r), v(v2), LN[r]))
        k('v_readlane_b32 %s, %s, %d' % (s(44 + r), v(m2), LN[r]))
    k('v_readlane_b32 s48, %s, s38' % v(r1))
    k('v_readlane_b32 s49, %s, s38' % v(b1))
    def affine(r, T, sa, sb):
        k('v_mov_b32 %s, %s' % (v(T + 15), sb))
        for m in range(5):
            k('v_lshlrev_b32 %s, 16, %s' % (v(T + m), v(X[r] + m)))
            k('v_and_b32 %s, s36, %s' % (v(T + 5 + m), v(X[r] + m)))
        for m in range(10):
            k('v_fma_f32 %s, %s, %s, %s' % (v(T + m), v(T + m), sa, v(T + 15)))
        for m in range(5):
            k('v_cvt_pk_bf16_f32 %s, %s, %s' % (v(T + 10 + m), v(T + m), v(T + 5 + m)))
    for r in range(4):
        T = TT[r % 2]
        affine(r, T, s(40 + r), s(44 + r))
        for m in range(5):
            k('ds_write_b32 %s, %s offset:%d' % (v(wa + r), v(T + 10 + m), m * KBS))
    ra = [za for za in (zo, xo, wa)]
    k('v_xor_b32 %s, %s, %s' % (v(tmp), v(ti), v(tq)))
    k('v_lshlrev_b32 %s, 4, %s' % (v(tmp), v(tmp)))
    k('v_lshl_add_u32 %s, %s, 8, %s' % (v(tmp), v(tq), v(tmp)))
    k('s_mul_i32 s34, s30, %d' % (10 * KBS))
    k('s_add_u32 s34, s34, %d' % AT)
    k('s_lshl_b32 s35, s30, 10')
    k('s_add_u32 s35, s35, s34')
    k('v_add_u32 %s, s35, %s' % (v(ra[0]), v(tmp)))
    k('s_xor_b32 s35, s30, 1')
    k('s_lshl_b32 s35, s35, 10')
    k('s_add_u32 s35, s35, s34')
    k('v_add_u32 %s, s35, %s' % (v(ra[1]), v(tmp)))
    k('s_lshr_b32 s35, s29, 1')
    k('s_lshl_b32 s35, s35, 10')
    k('s_add_u32 s35, s35, s34')
    k('v_add_u32 %s, s35, %s' % (v(ra[2]), v(tmp)))
    k.barrier()
    AF = [[ZF + 12 * b + 4 * n for n in range(3)] for b in range(2)]
    acc = [TB + 36 + 4 * n for n in range(5)]
    def areads(ks):
        for n in range(3):
            k('ds_read_b128 %s, %s offset:%d' % (v(AF[ks % 2][n], 4), v(ra[n]), ks * KBS))
    areads(0)
    ho = wa + 1
    k('v_mul_u32_u24 %s, %d, %s' % (v(ho), 5 * S * 64, v(tq)))
    k('v_lshl_add_u32 %s, %s, 2, %s' % (v(ho), v(ti), v(ho)))
    k('s_lshl_b32 s50, s26, 2')
    k('s_add_u32 s50, s50, s22')
    k('s_lshl_b32 s50, s50, 6')
    for m in range(1, 5):
        k('s_add_u32 %s, s50, %d' % (s(50 + m), m * S * 64))
    srd_ws(k, 8, 16, 'H')
    srd_ws(k, 12, 16, 'LN1')
    join = k.newlabel('join')
    sv = k.save()
    for r in range(4):
        k.restore(sv)
        nxt = k.newlabel('sw')
        if r < 3:
            k('s_cmp_lg_u32 s22, %d' % r)
            k('s_cbranch_scc1 %s' % nxt)
        for m in range(5):
            k('buffer_store_dword %s, %s, s[8:11], %s offen' % (v(X[r] + m), v(ho), s(50 + m)))
        affine(r, TT[0], 's48', 's49')
        for m in range(5):
            k('buffer_store_dword %s, %s, s[12:15], %s offen' % (v(TT[0] + 10 + m), v(ho), s(50 + m)))
        if r < 3:
            k('s_branch %s' % join)
            k.label(nxt)
    k.label(join)
    for ks in range(10):
        if ks < 9:
            areads(ks + 1)
        A = AF[ks % 2]
        for n, (wi, ai) in enumerate(((0, 1), (1, 1), (2, 2), (0, 0), (1, 0))):
            d = acc[(2, 3, 4, 0, 1)[n]]
            k('%s %s, %s, %s, %s' % (MFMA, v(d, 4), Wr[ks][wi], v(A[ai], 4), v(d, 4) if ks else '0'))
    k('s_mul_i32 s34, s20, 3072')
    k('s_xor_b32 s35, s20, 4')
    k('s_mul_i32 s35, s35, 3072')
    k('v_add_u32 %s, s34, %s' % (v(ra[0]), v(l16)))
    k('v_add_u32 %s, s35, %s' % (v(ra[1]), v(l16)))
    for n in range(3):
        k('ds_write_b128 %s, %s offset:%d' % (v(ra[0]), v(acc[2 + n], 4), ZT + 1024 * n))
    ao, h8, g2 = wa + 1, wa + 2, wa + 3
    k('v_lshlrev_b32 %s, 6, %s' % (v(tmp), v(ti)))
    k('v_lshl_add_u32 %s, %s, 4, %s' % (v(ao), v(tq), v(tmp)))
    k('v_lshl_add_u32 %s, %s, 3, %s' % (v(h8), v(tq), v(tmp)))
    k('v_mov_b32 %s, 0x%x' % (v(g2), f32_bits(G2)))
    k('s_mov_b32 s37, 0x%x' % f32_bits(G1))
    k('s_lshl_b32 s38, s22, 2')
    k('s_lshr_b32 s38, 0x0413, s38')
    k('s_and_b32 s38, s38, 15')
    k('s_lshl_b32 s39, s21, 5')
    k('s_add_u32 s38, s38, s39')
    k('s_mul_i32 s39, s22, %d' % (5 * HHR))
    k('s_add_u32 s38, s38, s39')
    k('s_mul_i32 s40, s29, %d' % HHR)
    k('s_add_u32 s40, s40, s38')
    k('s_lshl_b32 s41, s30, 4')
    k('s_add_u32 s40, s40, s41')
    k('s_lshl_b32 s40, s40, 6')
    k('s_lshr_b32 s41, s29, 1')
    k('s_lshl_b32 s41, s41, 4')
    k('s_add_u32 s41, s41, s38')
    k('s_add_u32 s41, s41, %d' % (4 * HHR))
    k('s_lshl_b32 s41, s41, 6')
    k('s_and_b32 s42, s29, 1')
    k('s_lshl_b32 s42, s42, 5')
    k('s_add_u32 s41, s41, s42')
    k('s_lshl_b32 s42, s30, 30')
    k('s_add_u32 s41, s41, s42')
    srd_ws(k, 4, 16, 'HH')
    k.barrier()
    R = TT[0]
    for n in range(3):
        k('ds_read_b128 %s, %s offset:%d' % (v(R + 4 * n, 4), v(ra[1]), ZT + 1024 * n))
    xs = [acc[t] + r for t in (0, 1, 4) for r in range(4)]
    for n, x_ in enumerate(xs):
        k('v_add_f32 %s, %s, %s' % (v(x_), v(x_), v(R + n)))
    gelu(k, xs, [TT[1] + n for n in range(12)], 's37', g2)
    for r in range(4):
        k('v_cvt_pk_bf16_f32 %s, %s, %s' % (v(R + r), v(xs[r]), v(xs[4 + r])))
    for r in range(2):
        k('v_cvt_pk_bf16_f32 %s, %s, %s' % (v(R + 4 + r), v(xs[8 + 2 * r]), v(xs[9 + 2 * r])))
    k('buffer_store_dwordx4 %s, %s, s[4:7], s40 offen' % (v(R, 4), v(ao)))
    k('buffer_store_dwordx2 %s, %s, s[4:7], s41 offen' % (v(R + 4, 2), v(h8)))
    fin = k.newlabel('fin')
    k('s_and_b32 s42, s22, 1')
    k('s_mul_i32 s43, s42, 63')
    k('s_lshl_b32 s44, s20, 8')
    k('s_add_u32 s44, s44, s21')
    k('s_cmp_lg_u32 s44, s43')
    k('s_cbranch_scc1 %s' % fin)
    k('s_lshr_b32 s43, s22, 1')
    k('s_add_u32 s44, s43, 1')
    k('s_sub_u32 s43, %d, s43' % (S + 1))
    k('s_cmp_eq_u32 s42, 0')
    k('s_cselect_b32 s43, s44, s43')
    k('s_add_u32 s43, s43, s39')
    k('s_lshl_b32 s43, s43, 6')
    k('v_lshrrev_b32 %s, 3, v0' % v(tmp))
    k('v_mul_u32_u24 %s, %d, %s' % (v(tmp), HHR * 64, v(tmp)))
    k('v_and_b32 %s, 7, v0' % v(ao))
    k('v_lshl_add_u32 %s, %s, 4, %s' % (v(tmp), v(ao), v(tmp)))
    k('v_mov_b32 %s, 0x40000000' % v(ao))
    k('v_cmp_gt_u32 vcc, 40, v0')
    k('v_cndmask_b32 %s, %s, %s, vcc' % (v(tmp), v(ao), v(tmp)))
    for n in range(4):
        k('v_mov_b32 %s, 0' % v(TT[1] + n))
    k('buffer_store_dwordx4 %s, %s, s[4:7], s43 offen' % (v(TT[1], 4), v(tmp)))
    k.label(fin)
    k.end()
```

```python
import re, copy

TRANS = ('v_exp_f32', 'v_log_f32', 'v_rcp_f32', 'v_rsq_f32', 'v_sqrt_f32', 'v_sin_f32', 'v_cos_f32',
         'v_rcp_iflag_f32', 'v_exp_f16', 'v_log_f16', 'v_rcp_f16', 'v_rsq_f16', 'v_sqrt_f16')
DPPW = ('quad_perm', 'row_shr', 'row_shl', 'row_ror', 'row_bcast', 'row_mirror', 'row_half_mirror',
        'wave_shl', 'wave_shr', 'wave_rol', 'wave_ror', 'row_newbcast')
REG = re.compile(r'^(-|\|)?\|?([vas])(\d+|\[(\d+):(\d+)\])\|?$')


def regs_of(tok):
    tok = tok.strip()
    if tok.startswith('-'):
        tok = tok[1:]
    tok = tok.strip('|')
    if tok.startswith('abs(') or tok.startswith('neg('):
        tok = tok[4:-1]
    if tok == 'vcc':
        return {('s', 106), ('s', 107)}
    if tok == 'vcc_lo':
        return {('s', 106)}
    if tok == 'vcc_hi':
        return {('s', 107)}
    if tok == 'exec':
        return {('s', 126), ('s', 127)}
    if tok == 'exec_lo':
        return {('s', 126)}
    if tok == 'exec_hi':
        return {('s', 127)}
    if tok == 'm0':
        return {('s', 124)}
    m = re.match(r'^([vas])(\d+)$', tok)
    if m:
        return {(m.group(1), int(m.group(2)))}
    m = re.match(r'^([vas])\[(\d+):(\d+)\]$', tok)
    if m:
        return {(m.group(1), i) for i in range(int(m.group(2)), int(m.group(3)) + 1)}
    return set()


def split_ops(s):
    ops, cur, depth = [], '', 0
    for ch in s:
        if ch in '[(':
            depth += 1
        if ch in '])':
            depth -= 1
        if ch == ',' and depth == 0:
            ops.append(cur.strip())
            cur = ''
        else:
            cur += ch
    if cur.strip():
        ops.append(cur.strip())
    mods = ''
    if ops:
        last = ops[-1]
        depth = 0
        for i, ch in enumerate(last):
            if ch in '[(':
                depth += 1
            if ch in '])':
                depth -= 1
            if ch == ' ' and depth == 0:
                ops[-1], mods = last[:i], last[i + 1:]
                break
    return ops, mods


class Ins:
    __slots__ = ('text', 'mn', 'ops', 'mods', 'cls', 'w', 'r', 'slots', 'passes', 'A', 'B', 'C', 'dpp', 'trans',
                 'wide_store', 'lds_dma', 'sdwa_dst', 'target')

    def __init__(self, text):
        self.text = text
        t = text.split(';')[0].strip()
        parts = t.split(None, 1)
        mn = parts[0]
        self.mn = mn
        ops, mods = split_ops(parts[1]) if len(parts) > 1 else ([], '')
        self.ops, self.mods = ops, mods
        self.w, self.r = set(), set()
        self.slots = 1
        self.passes = 0
        self.A = self.B = self.C = set()
        self.dpp = self.trans = self.wide_store = self.lds_dma = self.sdwa_dst = False
        self.target = None
        R = [regs_of(o) for o in ops]
        allr = set().union(*R) if R else set()
        base = re.sub(r'_(e32|e64|dpp|sdwa)$', '', mn)
        if mn.startswith('v_mfma'):
            self.cls = 'mfma'
            self.w = R[0]
            self.A, self.B, self.C = R[1], R[2], R[3]
            self.r = R[1] | R[2] | R[3]
            self.passes = 8 if '32x32' in mn else 4
        elif mn.startswith('v_'):
            self.cls = 'valu'
            if base == 'v_nop':
                pass
            elif base.startswith('v_cmpx'):
                raise ValueError('no cmpx')
            elif 'swap' in base:
                self.w = allr
                self.r = allr
            elif base in ('v_add_co_u32', 'v_sub_co_u32', 'v_subrev_co_u32', 'v_addc_co_u32', 'v_subb_co_u32',
                          'v_mad_u64_u32', 'v_div_scale_f32'):
                self.w = R[0] | R[1]
                self.r = set().union(*R[2:])
            else:
                self.w = R[0]
                self.r = set().union(*R[1:]) if len(R) > 1 else set()
                if base.startswith(('v_fmac', 'v_mac', 'v_pk_fmac', 'v_dot2c', 'v_writelane')):
                    self.r |= R[0]
                if base == 'v_cndmask_b32' and len(ops) == 3:
                    self.r |= regs_of('vcc')
            self.dpp = any(d in mods for d in DPPW)
            if self.dpp:
                self.r |= self.w
            self.trans = base in TRANS
            self.sdwa_dst = ('dst_sel' in mods and 'dst_sel:DWORD' not in mods)
        elif mn.startswith(('buffer_', 'global_')):
            self.cls = 'vmem'
            ml = mods.split()
            if 'load' in mn:
                if 'lds' in ml or '_lds_' in mn:
                    self.lds_dma = True
                    self.r = allr | regs_of('m0')
                else:
                    self.w = R[0]
                    self.r = set().union(*R[1:])
            elif 'atomic' in mn:
                if 'sc0' in ml:
                    self.w = R[0]
                self.r = allr
            else:
                self.r = allr
                self.wide_store = ('x3' in mn or 'x4' in mn)
                if self.wide_store:
                    self.A = R[0] if mn.startswith('buffer_') else R[1]
        elif mn.startswith('ds_'):
            self.cls = 'ds'
            if mn.startswith(('ds_read', 'ds_bpermute', 'ds_permute', 'ds_swizzle')) or '_rtn' in mn:
                self.w = R[0]
                self.r = set().union(*R[1:])
            else:
                self.r = allr
        elif mn.startswith(('s_load', 's_buffer_load', 's_memtime', 's_memrealtime')):
            self.cls = 'smem'
            self.w = R[0]
            self.r = set().union(*R[1:]) if len(R) > 1 else set()
        elif mn.startswith('s_'):
            self.cls = 'salu'
            if mn == 's_nop':
                self.slots = int(ops[0], 0) + 1
            elif mn.startswith(('s_cbranch', 's_branch')):
                self.target = ops[0]
            elif mn.startswith(('s_cmp', 's_waitcnt', 's_barrier', 's_endpgm', 's_setprio', 's_sleep', 's_bitcmp')):
                self.r = allr
            else:
                self.w = R[0]
                self.r = set().union(*R[1:]) if len(R) > 1 else set()
                if 'saveexec' in mn:
                    self.w |= regs_of('exec')
        else:
            raise ValueError('unknown instr ' + text)


def vg(s):
    return {x for x in s if x[0] in 'va'}


def sg(s):
    return {x for x in s if x[0] == 's'}


def need_states(p, c):
    n = 0
    if p.cls == 'valu':
        pw, ps = vg(p.w), sg(p.w)
        if p.mn.startswith('v_dot') and pw & (c.r | c.w):
            same_c = (c.mn == p.mn and not (pw & (regs_of(c.ops[1]) | regs_of(c.ops[2]))))
            if not same_c:
                n = max(n, 3)
        if c.cls == 'mfma' and pw & c.r:
            n = max(n, 2)
        if c.cls == 'valu':
            if c.dpp and pw & c.r:
                n = max(n, 2)
            if 'permlane' in c.mn and pw & c.r:
                n = max(n, 2)
            if c.mn.startswith(('v_readlane', 'v_readfirstlane')) and pw & c.r:
                n = max(n, 1)
            if p.trans and pw & (c.r | c.w):
                n = max(n, 1)
            if p.sdwa_dst and pw & (c.r | c.w):
                n = max(n, 1)
            if ps & c.r:
                n = max(n, 4 if c.mn.startswith(('v_readlane', 'v_writelane', 'v_div_fmas')) else 2)
        if c.cls == 'vmem' and ps & c.r:
            n = max(n, 5)
        if c.cls in ('salu', 'smem') and ps & c.r:
            n = max(n, 1)
    elif p.cls == 'mfma':
        big = 8 if p.passes == 4 else 12
        if c.cls == 'mfma':
            if p.w & (c.A | c.B):
                n = max(n, big)
            if p.w & c.C:
                if not (p.w == c.C and p.passes == c.passes):
                    n = max(n, 6 if p.passes == 4 else 10)
            elif p.w & c.w:
                n = max(n, big)
        elif c.cls in ('valu', 'vmem', 'ds'):
            if p.w & (c.r | c.w):
                n = max(n, big)
            if c.cls == 'valu' and p.C & c.w:
                n = max(n, 3 if p.passes == 4 else 7)
            if c.cls in ('vmem', 'ds') and p.C & c.w:
                n = max(n, 3 if p.passes == 4 else 7)
    elif p.cls == 'vmem':
        if p.wide_store and p.A & c.w:
            n = max(n, 2)
    elif p.cls == 'salu':
        if ('s', 124) in p.w and c.cls == 'vmem' and c.lds_dma:
            n = max(n, 1)
        if ({('s', 126), ('s', 127)} & p.w) and c.cls == 'valu' and c.dpp:
            n = max(n, 1)
    if p.cls == 'ds' and p.mn.startswith('ds_write') and ('b128' in p.mn or 'b96' in p.mn):
        if c.cls == 'valu' and (p.r & c.w):
            n = max(n, 1)
    return n


class Kern:
    def __init__(self, name):
        self.name = name
        self.out = []
        self.vmq = []
        self.lgq = []
        self.nid = 0
        self.hist = []
        self.lbl = 0
        self.maxv = -1
        self.maxa = -1
        self.maxs = -1
        self.nops = 0

    def _raw(self, ins):
        need = 0
        dist = 0
        for p in reversed(self.hist):
            if dist >= 20:
                break
            need = max(need, need_states(p, ins) - dist)
            dist += p.slots
        while need > 0:
            n = min(need, 16)
            nop = Ins('s_nop %d' % (n - 1))
            self.out.append(nop)
            self.hist.append(nop)
            self.nops += n
            need -= n
        self.out.append(ins)
        self.hist.append(ins)
        if len(self.hist) > 40:
            self.hist = self.hist[-24:]
        for (t, i) in ins.w | ins.r:
            if t == 'v':
                self.maxv = max(self.maxv, i)
            elif t == 'a':
                self.maxa = max(self.maxa, i)
            elif i < 102:
                self.maxs = max(self.maxs, i)

    def _wait(self, vm=None, lg=None):
        parts = []
        if vm is not None:
            vm = min(vm, 63)
            parts.append('vmcnt(%d)' % vm)
            self.vmq = self.vmq[len(self.vmq) - vm:] if vm else []
        if lg is not None:
            lg = min(lg, 15)
            parts.append('lgkmcnt(%d)' % lg)
            self.lgq = self.lgq[len(self.lgq) - lg:] if lg else []
        if parts:
            self._raw(Ins('s_waitcnt ' + ' '.join(parts)))

    def __call__(self, text):
        for line in text.strip().split('\n'):
            line = line.strip()
            if not line or line.startswith(';'):
                continue
            self.op(line)

    def op(self, text):
        ins = Ins(text)
        touch = ins.r | ins.w
        vm = lg = None
        for idx in range(len(self.vmq) - 1, -1, -1):
            w = self.vmq[idx][1]
            hit = w & (ins.r if ins.cls == 'vmem' else touch)
            if hit:
                vm = len(self.vmq) - 1 - idx
                break
        anysm = any(e[2] for e in self.lgq)
        for idx in range(len(self.lgq) - 1, -1, -1):
            w = self.lgq[idx][1]
            hit = w & (ins.r if (ins.cls == 'ds' and not self.lgq[idx][2]) else touch)
            if hit:
                lg = 0 if anysm else len(self.lgq) - 1 - idx
                break
        self._wait(vm, lg)
        self._raw(ins)
        self.nid += 1
        if ins.cls == 'vmem':
            self.vmq.append((self.nid, set(ins.w)))
        elif ins.cls == 'ds':
            self.lgq.append((self.nid, set(ins.w), False))
        elif ins.cls == 'smem':
            self.lgq.append((self.nid, set(ins.w), True))
        return self.nid

    def wait_vm(self, token=None):
        if token is None:
            if self.vmq:
                self._wait(vm=0)
            return
        for idx, e in enumerate(self.vmq):
            if e[0] == token:
                self._wait(vm=len(self.vmq) - 1 - idx)
                return

    def wait_lg(self):
        if self.lgq:
            self._wait(lg=0)

    def barrier(self, vm=False):
        if vm is True:
            self.wait_vm()
        elif vm:
            self.wait_vm(vm)
        self.wait_lg()
        self._raw(Ins('s_barrier'))

    def label(self, name):
        self.out.append(name + ':')

    def newlabel(self, hint='L'):
        self.lbl += 1
        return '.L%s_%s%d' % (self.name, hint, self.lbl)

    def comment(self, s):
        self.out.append('; ' + s)

    def save(self):
        return (list(self.vmq), list(self.lgq), list(self.hist))

    def restore(self, st):
        self.vmq, self.lgq, self.hist = list(st[0]), list(st[1]), list(st[2])

    def end(self):
        self._raw(Ins('s_endpgm'))
        self.vmq, self.lgq, self.hist = [], [], []

    def check_branches(self):
        lab = {o[:-1]: i for i, o in enumerate(self.out) if isinstance(o, str) and o.endswith(':')}
        for i, o in enumerate(self.out):
            if isinstance(o, Ins) and o.target in lab:
                hist = [x for x in self.out[max(0, i - 30):i + 1] if isinstance(x, Ins)]
                j = lab[o.target]
                cnt = 0
                while j < len(self.out) and cnt < 22:
                    c = self.out[j]
                    j += 1
                    if not isinstance(c, Ins):
                        continue
                    dist = 0
                    for p in reversed(hist):
                        if need_states(p, c) > dist:
                            raise RuntimeError('hazard across branch %s: %s -> %s' % (o.text, p.text, c.text))
                        dist += p.slots
                    hist.append(c)
                    cnt += c.slots
                    if c.mn in ('s_branch', 's_endpgm'):
                        break

    def text(self):
        self.check_branches()
        L = []
        for o in self.out:
            L.append(o if isinstance(o, str) else '  ' + o.text)
        return '\n'.join(L)

    def ninstr(self):
        return sum(1 for o in self.out if isinstance(o, Ins))


def v(i, n=1):
    return 'v%d' % i if n == 1 else 'v[%d:%d]' % (i, i + n - 1)


def a(i, n=1):
    return 'a%d' % i if n == 1 else 'a[%d:%d]' % (i, i + n - 1)


def s(i, n=1):
    return 's%d' % i if n == 1 else 's[%d:%d]' % (i, i + n - 1)


class Alloc:
    def __init__(self, start=0, limit=256):
        self.n = start
        self.limit = limit

    def __call__(self, n=1, align=1):
        if n > 1:
            align = max(align, 2)
        self.n = (self.n + align - 1) // align * align
        r = self.n
        self.n += n
        assert self.n <= self.limit, 'out of registers'
        return r
```

```python
from common import *

PREP = dict(
    w1=('w1', 'W1F', 640, 640, 20, 20, 10, 5, 5, 1, False),
    w2=('w2', 'W2F', 640, 640, 20, 20, 5, 5, 5, 1, False),
    w3=('w3', 'W3F', 1728, 640, 54, 20, 7, 7, 5, 1, True),
    w4=('w4', 'W4F', 640, 1728, 20, 56, 5, 5, 7, 2, False),
)

def prep_count(name):
    p = PREP[name]
    return p[4] * p[9]

def tile_cols(name):
    ka, reg, NC, NR, NU, NKp, NT, P, KPW, NG, cs = PREP[name]
    out = {}
    i = np.arange(16)
    hp = P // 2
    for u in range(NU):
        t, r = divmod(u, P)
        if name == 'w1':
            halves = r == 4
            d = [(t, 2 * r), (t, 2 * r + 1)]
        elif r < hp:
            halves, d = False, [(2 * t, 2 * r), (2 * t, 2 * r + 1)]
        elif r == hp:
            halves, d = True, [(2 * t, NT - 1), (2 * t + 1, NT - 1)]
        else:
            halves, d = False, [(2 * t + 1, 2 * (r - hp - 1)), (2 * t + 1, 2 * (r - hp - 1) + 1)]
        for h in range(2):
            out[d[h]] = 32 * u + (16 * h + i if halves else 2 * i + h)
    return out

def emit_prep(name):
    ka, reg, NC, NR, NU, NKp, NT, P, KPW, NG, cs = PREP[name]
    hp = P // 2
    pitch = NC * 2
    def fn(k, wg0):
        va = Alloc(1)
        k.stamp(0)
        k('s_load_dwordx2 s[4:5], s[0:1], %d' % KA[ka])
        k('s_load_dwordx2 s[16:17], s[0:1], %d' % KA['ws'])
        k('s_sub_u32 s3, s2, %d' % wg0)
        ti, tq, lane, lo = va(), va(), va(), va()
        k('v_lshrrev_b32 %s, 6, v0' % v(ti))
        k('v_and_b32 %s, 63, v0' % v(lane))
        k('v_readfirstlane_b32 s20, %s' % v(ti))
        k('v_and_b32 %s, 15, v0' % v(ti))
        k('v_lshrrev_b32 %s, 4, %s' % (v(tq), v(lane)))
        k('v_mul_u32_u24 %s, %d, %s' % (v(lo), 8 * pitch, v(tq)))
        k('v_lshlrev_b32 %s, 4, %s' % (v(lane), v(lane)))
        if NG == 2:
            k('s_and_b32 s21, s3, 1')
            k('s_lshr_b32 s3, s3, 1')
            k('s_lshl_b32 s21, s21, 2')
            k('s_add_u32 s20, s20, s21')
        k('s_mul_i32 s21, s20, %d' % KPW)
        k('s_mul_i32 s22, s3, %d' % (65536 // P + 1))
        k('s_lshr_b32 s22, s22, 16')
        k('s_mul_i32 s23, s22, %d' % P)
        k('s_sub_u32 s23, s3, s23')
        k('s_mul_i32 s24, s21, %d' % (32 * pitch))
        k('s_lshl_b32 s25, s3, 6')
        k('s_add_u32 s24, s24, s25')
        k('s_mov_b32 s6, 0x%x' % (NR * pitch))
        k('s_mov_b32 s7, 0x00020000')
        CBS = NKp * NT
        if name == 'w1':
            k('s_mul_i32 s26, s22, %d' % CBS)
            k('s_lshl_b32 s27, s23, 1')
            k('s_add_u32 s26, s26, s27')
            k('s_add_u32 s27, s26, 1')
            hv = 4
        else:
            for (d0, cbs) in ((26, CBS), (28, NT)) if cs else ((26, CBS),):
                k('s_mul_i32 %s, s22, %d' % (s(d0), 2 * cbs))
                k('s_lshl_b32 s30, s23, 1')
                k('s_add_u32 %s, %s, s30' % (s(d0), s(d0)))
                k('s_cmp_gt_u32 s23, %d' % hp)
                k('s_cselect_b32 s30, %d, 0' % (cbs - 2 * hp - 2))
                k('s_add_u32 %s, %s, s30' % (s(d0), s(d0)))
                k('s_cmp_eq_u32 s23, %d' % hp)
                k('s_cselect_b32 s30, %d, 1' % cbs)
                k('s_add_u32 %s, %s, s30' % (s(d0 + 1), s(d0)))
            hv = hp
        k('s_mul_i32 s30, s21, %d' % NT)
        k('s_add_u32 s26, s26, s30')
        k('s_add_u32 s27, s27, s30')
        k('s_lshl_b32 s26, s26, 10')
        k('s_lshl_b32 s27, s27, 10')
        k('s_mov_b32 s32, 0x05040100')
        k('s_mov_b32 s33, 0x07060302')
        R = va(16 * KPW, 4)
        O = va(8 * KPW, 4)
        ones, acc = va(4, 4), va(8, 4)
        lhal, lfin = k.newlabel('hal'), k.newlabel('fin')
        def soff_for(row):
            off = row * pitch
            return off
        def loads(kind):
            cur = None
            for ks in range(KPW):
                for j in range(8):
                    off = (32 * ks + j) * pitch
                    if NG == 2 and ks == 5 and j == 0:
                        k('s_cmp_eq_u32 s21, 49')
                        k('s_cselect_b32 s31, %d, 0' % (64 * pitch))
                        k('s_sub_u32 s24, s24, s31')
                        cur = None
                    if cur is None or off + 32 - cur > 4095:
                        k('s_add_u32 s31, s24, %d' % off)
                        cur = off
                    if kind == 'pair':
                        k('buffer_load_dword %s, %s, s[4:7], s31 offen offset:%d' % (v(R + 8 * ks + j), v(lo), off - cur))
                    else:
                        for h in range(2):
                            k('buffer_load_ushort %s, %s, s[4:7], s31 offen offset:%d' % (v(R + 16 * ks + 8 * h + j), v(lo), off - cur + 32 * h))
        def stores(ks):
            for h in range(2):
                if cs:
                    k('%s %s, %s, %s, %s' % (MFMA, v(acc + 4 * h, 4), v(O + 8 * ks + 4 * h, 4), v(ones, 4), v(acc + 4 * h, 4) if ks else '0'))
                k('buffer_store_dwordx4 %s, %s, s[12:15], %s offen' % (v(O + 8 * ks + 4 * h, 4), v(lane), s(26 + h)))
                if ks + 1 < KPW:
                    k('s_add_u32 %s, %s, %d' % (s(26 + h), s(26 + h), NT * 1024))
        if cs:
            for n in range(4):
                k('v_mov_b32 %s, 0x3f803f80' % v(ones + n))
        k('s_cmp_eq_u32 s23, %d' % hv)
        k('s_cbranch_scc1 %s' % lhal)
        st = k.save()
        k('v_lshl_add_u32 %s, %s, 2, %s' % (v(lo), v(ti), v(lo)))
        loads('pair')
        k.stamp(1)
        srd_ws(k, 12, 16, reg)
        for ks in range(KPW):
            for h in range(2):
                for m in range(4):
                    k('v_perm_b32 %s, %s, %s, %s' % (v(O + 8 * ks + 4 * h + m), v(R + 8 * ks + 2 * m + 1), v(R + 8 * ks + 2 * m), s(32 + h)))
            stores(ks)
        if cs:
            k('s_branch %s' % lfin)
        else:
            k.end()
        k.label(lhal)
        k.restore(st)
        k('v_lshl_add_u32 %s, %s, 1, %s' % (v(lo), v(ti), v(lo)))
        loads('half')
        k.stamp(1)
        srd_ws(k, 12, 16, reg)
        for ks in range(KPW):
            for h in range(2):
                for m in range(4):
                    b = R + 16 * ks + 8 * h + 2 * m
                    k('v_lshl_or_b32 %s, %s, 16, %s' % (v(O + 8 * ks + 4 * h + m), v(b + 1), v(b)))
            stores(ks)
        if cs:
            k.label(lfin)
            k('s_nop 7')
            k('s_nop 7')
            k('s_lshl_b32 s30, s20, 11')
            k('v_add_u32 %s, s30, %s' % (v(lo), v(lane)))
            k('ds_write_b128 %s, %s' % (v(lo), v(acc, 4)))
            k('ds_write_b128 %s, %s offset:1024' % (v(lo), v(acc + 4, 4)))
            k.barrier()
            lend = k.newlabel('pe')
            k('s_cmp_gt_u32 s20, 1')
            k('s_cbranch_scc1 %s' % lend)
            k('s_lshl_b32 s30, s20, 10')
            k('v_add_u32 %s, s30, %s' % (v(lo), v(lane)))
            for w in range(4):
                k('ds_read_b128 %s, %s offset:%d' % (v(R + 4 * w, 4), v(lo), 2048 * w))
            srd_ws(k, 12, 16, 'CS3')
            k('s_cmp_eq_u32 s20, 0')
            k('s_cselect_b32 s28, s28, s29')
            k('s_lshl_b32 s28, s28, 6')
            k('v_lshlrev_b32 %s, 4, %s' % (v(tq), v(tq)))
            k('v_mov_b32 %s, 0x40000000' % v(lo))
            k('v_cmp_eq_u32 vcc, 0, %s' % v(ti))
            k('v_cndmask_b32 %s, %s, %s, vcc' % (v(tq), v(lo), v(tq)))
            for n in range(4):
                k('v_add_f32 %s, %s, %s' % (v(R + n), v(R + n), v(R + 4 + n)))
                k('v_add_f32 %s, %s, %s' % (v(R + 8 + n), v(R + 8 + n), v(R + 12 + n)))
                k('v_add_f32 %s, %s, %s' % (v(R + n), v(R + n), v(R + 8 + n)))
            k('buffer_store_dwordx4 %s, %s, s[12:15], s28 offen' % (v(R, 4), v(tq)))
            k.label(lend)
        k.end()
    return fn
```

```python
from common import *
import k2, gemm2, prep
import k3n as k3

def kernels(roles):
    out = []
    k = newkern('k2_kernel')
    n = roles(k, [(321, k2.emit_col_role)] + [(prep.prep_count(w), prep.emit_prep(w)) for w in ('w4',)] + [(prep.cs_count(w), prep.emit_cs(w)) for w in ('w1', 'w3')])
    out.append((k, n, 256, k2.K2_LDS, ''))
    k = newkern('k3_kernel')
    n = roles(k, [(256, k3.emit_k3)])
    out.append((k, n, 512, k3.K3_LDS, ''))
    for kind in ('k5', 'k6', 'k7'):
        k = newkern(kind + '_kernel')
        n = roles(k, [(256, gemm2.emit_gemmB if kind == 'k6' else gemm2.emit_gemmA(kind))])
        out.append((k, n, 512, gemm2.gemm_lds(kind), ''))
    return out
```

```python
import sys, importlib
from common import *
import k1, prep
NAME = 'sequential_preLN__spectral_gfnet__mixer_s_mlp__prompt'

def roles(k, lst):
    base = 0
    labs = []
    for n, fn in lst:
        l = k.newlabel('role')
        labs.append((l, base, fn))
        base += n
    st = k.save()
    ends = []
    b = 0
    for idx, (n, fn) in enumerate(lst):
        b += n
        ends.append(b)
    other = k.newlabel('other')
    k('s_cmp_ge_u32 s2, %d' % ends[0])
    k('s_cbranch_scc1 %s' % other)
    lst[0][1](k, 0)
    k.label(other)
    for idx in range(1, len(lst)):
        k.restore(st)
        nxt = k.newlabel('other')
        k('s_cmp_ge_u32 s2, %d' % ends[idx])
        k('s_cbranch_scc1 %s' % nxt)
        lst[idx][1](k, ends[idx - 1])
        k.label(nxt)
    k.restore(st)
    k.end()
    return ends[-1]

def build(upto=99):
    kernels = []
    k = newkern('k1_kernel')
    n = roles(k, [(256, lambda k, b: k1.emit_fft_role(k)), (256, k1.emit_wt_role)] + [(prep.prep_count(w), prep.emit_prep(w)) for w in ('w1', 'w3', 'w2')])
    kernels.append((k, n, 256, 16384, ''))
    try:
        import rest
        kernels += rest.kernels(roles)
    except ImportError:
        pass
    kernels = kernels[:upto]
    hdr = ['; generated; kernel list']
    for (k, g, b, lds, _) in kernels:
        hdr.append('; @launch kernel=%s grid=(%d,1,1) block=(%d,1,1) lds=%d' % (k.name, g, b, lds))
    code, desc = [], []
    for (k, g, b, lds, tab) in kernels:
        c, d = kernel_text(k, tab)
        code.append(c)
        desc.append(d)
        print('%s: %d instr, nops %d, maxv %d maxa %d maxs %d' % (k.name, k.ninstr(), k.nops, k.maxv, k.maxa, k.maxs), file=sys.stderr)
    txt = '\n'.join(hdr) + '\n.amdgcn_target "amdgcn-amd-amdhsa--gfx950"\n.text\n' + '\n'.join(code) + \
        '\n.section .rodata,"a"\n' + '\n'.join(desc)
    return txt

if __name__ == '__main__':
    out = sys.argv[1] if len(sys.argv) > 1 else 'cdna_kernels/%s.s' % NAME
    open(out, 'w').write(build())
```

```python
import numpy as np
from lib import *

S, D, DF, F = 2048, 640, 321, 1728
BLK = 324 * 32
def al(x, a=4096): return (x + a - 1) // a * a
WS = {}
_off = 0
def region(name, nbytes):
    global _off
    WS[name] = (_off, nbytes)
    _off = al(_off + nbytes)
region('XB', 256 * BLK)
region('WB', 256 * BLK)
region('Z', DF * S * 4)
region('H', 20 * S * 64)
region('LN1', 20 * S * 64)
HHR = S + 4
region('HH', 20 * HHR * 64)
region('X1', 20 * S * 64)
region('ST1', S * 128)
region('G', 54 * S * 64)
region('W1F', 4 * 20 * 10 * 1024)
region('W2F', 8 * 20 * 5 * 1024)
region('W3F', 16 * 20 * 7 * 1024)
region('W4F', 8 * 56 * 5 * 1024)
region('CS3', 112 * 16 * 4)

region('PROF', 8 * 1024 * 16 * 64)
import os
PROF = os.environ.get('PROF') == '1'
_kidx = [0]
def newkern(name):
    k = Kern(name)
    if PROF:
        k.prof = (_kidx[0], WS['PROF'][0])
    _kidx[0] += 1
    return k

KA = dict(x=0, wr=8, wi=16, w1=32, w2=40, w3=48, w4=56, out=64, dbg=72, ws=80)


def bf16_bits(x):
    x = np.asarray(x, dtype=np.float32)
    u = x.view(np.uint32).astype(np.uint64)
    r = (u + 0x7fff + ((u >> 16) & 1)) >> 16
    return (r & 0xffff).astype(np.uint32)


def pack_frag(M):
    b = bf16_bits(M)
    return (b[:, 0::2] | (b[:, 1::2] << 16)).astype(np.uint32)


def f32_bits(x):
    return np.asarray(x, dtype=np.float32).view(np.uint32)


def table_text(label, words):
    words = np.asarray(words, dtype=np.uint32).ravel()
    L = ['.p2align 8', label + ':']
    for i in range(0, len(words), 8):
        L.append('.long ' + ','.join('0x%x' % w for w in words[i:i + 8]))
    return '\n'.join(L)


def srd_from(k, dst, base, off, nbytes):
    if off:
        k('s_add_u32 %s, %s, 0x%x' % (s(dst), s(base), off))
        k('s_addc_u32 %s, %s, 0' % (s(dst + 1), s(base + 1)))
    elif dst != base:
        k('s_mov_b32 %s, %s' % (s(dst), s(base)))
        k('s_mov_b32 %s, %s' % (s(dst + 1), s(base + 1)))
    k('s_mov_b32 %s, 0x%x' % (s(dst + 2), nbytes))
    k('s_mov_b32 %s, 0x00020000' % s(dst + 3))


def srd_ws(k, dst, wsbase, name):
    off, n = WS[name]
    srd_from(k, dst, wsbase, off, n)


def srd_table(k, dst, label, nbytes):
    l = k.newlabel('pc')
    k('s_getpc_b64 %s' % s(dst, 2))
    k.label(l)
    k('s_add_u32 %s, %s, %s-%s' % (s(dst), s(dst), label, l))
    k('s_addc_u32 %s, %s, 0' % (s(dst + 1), s(dst + 1)))
    k('s_mov_b32 %s, 0x%x' % (s(dst + 2), nbytes))
    k('s_mov_b32 %s, 0x00020000' % s(dst + 3))


def kernel_text(k, tables=''):
    nv = k.maxv + 1
    acc = (max(nv, 4) + 3) // 4 * 4
    na = k.maxa + 1
    nfv = acc + na if na else max(nv, 1)
    code = '.globl %s\n.p2align 8\n.type %s,@function\n%s:\n%s\n%s\n' % (k.name, k.name, k.name, k.text(), tables)
    desc = ('.p2align 6\n.amdhsa_kernel %s\n  .amdhsa_next_free_vgpr %d\n  .amdhsa_next_free_sgpr 102\n'
            '  .amdhsa_accum_offset %d\n  .amdhsa_group_segment_fixed_size 0\n  .amdhsa_kernarg_size 88\n'
            '  .amdhsa_user_sgpr_count 2\n  .amdhsa_user_sgpr_kernarg_segment_ptr 1\n'
            '  .amdhsa_system_sgpr_workgroup_id_x 1\n.end_amdhsa_kernel\n') % (k.name, nfv, acc)
    return code, desc


MFMA = 'v_mfma_f32_16x16x32_bf16'
```

```python
from common import *
from k1 import rnd_bf16

CK = 4

def gelu(k, x, t, sc1, sc2):
    for a_, b_ in zip(x, t):
        k('v_mul_f32 %s, %s, %s' % (v(b_), v(a_), v(a_)))
    for a_, b_ in zip(x, t):
        k('v_fma_f32 %s, %s, %s, %s' % (v(b_), v(b_), v(sc2), sc1))
    for a_, b_ in zip(x, t):
        k('v_mul_f32 %s, %s, %s' % (v(b_), v(b_), v(a_)))
    for a_, b_ in zip(x, t):
        k('v_exp_f32 %s, %s' % (v(b_), v(b_)))
    for a_, b_ in zip(x, t):
        k('v_add_f32 %s, 1.0, %s' % (v(b_), v(b_)))
    for a_, b_ in zip(x, t):
        k('v_rcp_f32 %s, %s' % (v(b_), v(b_)))
    for a_, b_ in zip(x, t):
        k('v_mul_f32 %s, %s, %s' % (v(a_), v(a_), v(b_)))

G1 = -2 * np.log2(np.e) * np.sqrt(2 / np.pi)
G2 = G1 * 0.044715

def qsum(k, x, t):
    k('v_mov_b32 %s, %s' % (v(t), v(x)))
    k('v_permlane32_swap_b32 %s, %s' % (v(x), v(t)))
    k('v_add_f32 %s, %s, %s' % (v(x), v(x), v(t)))
    k('v_mov_b32 %s, %s' % (v(t), v(x)))
    k('v_permlane16_swap_b32 %s, %s' % (v(x), v(t)))
    k('v_add_f32 %s, %s, %s' % (v(x), v(x), v(t)))


def gemm_lds(kind):
    return {'k5': 5 * 20 * 1024, 'k6': 5 * 28 * 1024, 'k7': 7 * 20 * 1024}[kind]


def emit_gemm(kind):
    MT, NT, NK, NKp, AREG, AROWS, AOFF, WREG, SLOTS = {
        'k5': (1, 5, 20, 20, 'HH', HHR, 2, 'W2F', 5),
        'k6': (2, 7, 20, 20, 'X1', S, 0, 'W3F', 5),
        'k7': (1, 5, 54, 56, 'G', S, 0, 'W4F', 7),
    }[kind]
    NP = NT // 2
    NCH = NKp // CK
    CHB = CK * NT * 1024
    def fn(k, wg0):
        va = Alloc(1)
        k.stamp(0)
        k('s_load_dwordx2 s[16:17], s[0:1], %d' % KA['ws'])
        if kind == 'k7':
            k('s_load_dwordx2 s[40:41], s[0:1], %d' % KA['out'])
        ti, tq, l16, ao, tmp = [va() for _ in range(5)]
        k('v_lshrrev_b32 %s, 6, v0' % v(ti))
        k('v_and_b32 %s, 63, v0' % v(l16))
        k('v_readfirstlane_b32 s20, %s' % v(ti))
        k('v_and_b32 %s, 15, v0' % v(ti))
        k('v_lshrrev_b32 %s, 4, %s' % (v(tq), v(l16)))
        k('v_lshlrev_b32 %s, 4, %s' % (v(l16), v(l16)))
        k('v_lshlrev_b32 %s, 4, %s' % (v(ao), v(tq)))
        k('v_lshl_add_u32 %s, %s, 6, %s' % (v(ao), v(ti), v(ao)))
        rbits = 3 if MT == 1 else 2
        k('s_bfe_u32 s21, s2, 0x20001')
        k('s_lshl_b32 s21, s21, %d' % rbits)
        k('s_bfe_u32 s23, s2, 0x%x' % ((rbits << 16) | 3))
        k('s_add_u32 s21, s21, s23')
        k('s_and_b32 s22, s2, 1')
        k('s_lshl_b32 s22, s22, %d' % (5 - rbits))
        k('s_lshr_b32 s23, s2, %d' % (3 + rbits))
        k('s_add_u32 s22, s22, s23')
        k('s_lshl_b32 s23, s21, 2')
        k('s_add_u32 s23, s23, s20')
        k('s_lshl_b32 s23, s23, %d' % (10 if MT == 1 else 11))
        k('s_add_u32 s24, s23, %d' % (AOFF * 64))
        k('s_mul_i32 s25, s22, %d' % (NKp * NT))
        k('s_mul_i32 s26, s20, %d' % NT)
        k('s_add_u32 s25, s25, s26')
        k('s_lshl_b32 s25, s25, 10')
        k('s_lshl_b32 s26, s26, 10')
        k('s_lshr_b32 s27, s22, 1')
        k('s_mul_i32 s27, s27, %d' % NT)
        k('s_add_u32 s28, s27, %d' % NP)
        k('s_and_b32 s29, s22, 1')
        k('s_mul_i32 s30, s29, %d' % (NP + 1))
        k('s_add_u32 s27, s27, s30')
        k('s_lshl_b32 s29, s29, 5')
        srd_ws(k, 4, 16, WREG)
        srd_ws(k, 8, 16, AREG)
        ACT = 0
        toks = {}
        def issue(c):
            slot = c % SLOTS
            for t in range(NT):
                if t % 4 == 0:
                    k('s_add_u32 m0, s26, %d' % (slot * CHB + t * 1024))
                    if t:
                        k('s_add_u32 s31, s25, %d' % (t * 1024))
                toks[c] = k.op('buffer_load_dwordx4 %s, s[4:7], %s offen offset:%d lds' % (v(l16), 's31' if t >= 4 else 's25', (t % 4) * 1024))
            k('s_add_u32 s25, s25, %d' % CHB)
            for ks in range(c * CK, min(NK, c * CK + CK)):
                for m in range(MT):
                    k('buffer_load_dwordx4 %s, %s, s[8:11], s24 offen offset:%d' % (a(ACT + 4 * (ks * MT + m), 4), v(ao), m * 1024))
                k('s_add_u32 s24, s24, %d' % (AROWS * 64))
        acc = [[va(4, 4) for t in range(NT)] for m in range(MT)]
        WB = [[va(4, 4) for t in range(NT)] for b in range(2)]
        issue(0)
        k.stamp(1)
        ho = va()
        k('v_lshlrev_b32 %s, 3, %s' % (v(ho), v(tq)))
        k('v_lshl_add_u32 %s, %s, 6, %s' % (v(ho), v(ti), v(ho)))
        k('s_lshl_b32 s32, s27, 17')
        k('s_add_u32 s32, s32, s23')
        for p in range(1, NP):
            k('s_add_u32 %s, s32, %d' % (s(32 + p), p << 17))
        k('s_lshl_b32 s35, s28, 17')
        k('s_add_u32 s35, s35, s23')
        k('s_add_u32 s35, s35, s29')
        k('s_mov_b32 s36, 0xffff0000')
        def ld_tile(R, srd):
            for p in range(NP):
                k('buffer_load_dwordx4 %s, %s, %s, %s offen' % (v(R + 4 * p, 4), v(ao), s(srd, 4), s(32 + p)))
            k('buffer_load_dwordx2 %s, %s, %s, s35 offen' % (v(R + 4 * NP, 2), v(ho), s(srd, 4)))
        def elems():
            for p in range(NP):
                for r in range(4):
                    for h in range(2):
                        yield acc[0][2 * p + h] + r, 4 * p + r, h
            for r in range(4):
                yield acc[0][NT - 1] + r, 4 * NP + r // 2, r % 2
        if kind == 'k5':
            R1 = va(10, 4)
            srd_ws(k, 12, 16, 'LN1')
            ld_tile(R1, 12)
        elif kind == 'k7':
            R1, R2 = va(10, 4), va(10, 4)
            srd_ws(k, 12, 16, 'H')
            ld_tile(R1, 12)
            srd_ws(k, 44, 16, 'X1')
            ld_tile(R2, 44)
        else:
            ST, CS = va(8, 4), va(4 * NT, 4)
            srd_ws(k, 12, 16, 'ST1')
            for m in range(MT):
                k('buffer_load_dwordx4 %s, %s, s[12:15], s23 offen offset:%d' % (v(ST + 4 * m, 4), v(ao), m * 1024))
            srd_ws(k, 44, 16, 'CS3')
            k('v_lshlrev_b32 %s, 4, %s' % (v(tmp), v(tq)))
            k('s_mul_i32 s37, s22, %d' % (NT * 64))
            for t in range(NT):
                k('buffer_load_dwordx4 %s, %s, s[44:47], s37 offen offset:%d' % (v(CS + 4 * t, 4), v(tmp), t * 64))
        for c in range(1, min(SLOTS, NCH)):
            issue(c)
        k.stamp(2)
        cinit = kind != 'k6'
        if kind == 'k5':
            for (ar, d, h) in elems():
                k(('v_and_b32 %s, s36, %s' if h else 'v_lshlrev_b32 %s, 16, %s') % (v(ar), v(R1 + d)))
        elif kind == 'k7':
            for (ar, d, h) in elems():
                k(('v_and_b32 %s, s36, %s' if h else 'v_lshlrev_b32 %s, 16, %s') % (v(ar), v(R1 + d)))
                k(('v_and_b32 %s, s36, %s' if h else 'v_lshlrev_b32 %s, 16, %s') % (v(tmp), v(R2 + d)))
                k('v_add_f32 %s, %s, %s' % (v(ar), v(ar), v(tmp)))
        else:
            RS, MR = va(2), va(2)
            for m in range(MT):
                sm, sq = ST + 4 * m, ST + 4 * m + 1
                k('v_add_f32 %s, %s, %s' % (v(sm), v(sm), v(sm + 2)))
                k('v_add_f32 %s, %s, %s' % (v(sq), v(sq), v(sq + 2)))
                qsum(k, sm, sm + 2)
                qsum(k, sq, sq + 2)
                k('v_mul_f32 %s, 0x3acccccd, %s' % (v(sm), v(sm)))
                k('v_mul_f32 %s, 0x3acccccd, %s' % (v(sq), v(sq)))
                k('v_fma_f32 %s, -%s, %s, %s' % (v(sq), v(sm), v(sm), v(sq)))
                k('v_max_f32 %s, 0, %s' % (v(sq), v(sq)))
                rnd_bf16(k, sq, sq)
                rnd_bf16(k, sm, sm)
                k('v_add_f32 %s, 0x3727c5ac, %s' % (v(sq), v(sq)))
                rnd_bf16(k, sq, sq)
                k('v_sqrt_f32 %s, %s' % (v(sq), v(sq)))
                rnd_bf16(k, sq, sq)
                k('v_rcp_f32 %s, %s' % (v(RS + m), v(sq)))
                k('v_mul_f32 %s, %s, %s' % (v(MR + m), v(sm), v(RS + m)))
        lb = [l16, va(), va()]
        k('v_add_u32 %s, 0x10000, %s' % (v(lb[1]), v(l16)))
        k('v_add_u32 %s, 0x20000, %s' % (v(lb[2]), v(l16)))
        def reads(ks):
            c = ks // CK
            for t in range(NT):
                off = (c % SLOTS) * CHB + ((ks % CK) * NT + t) * 1024
                k('ds_read_b128 %s, %s offset:%d' % (v(WB[ks % 2][t], 4), v(lb[off >> 16]), off & 0xffff))
        def mfmas(ks):
            for t in range(NT):
                for m in range(MT):
                    k('%s %s, %s, %s, %s' % (MFMA, v(acc[m][t], 4), v(WB[ks % 2][t], 4), a(ACT + 4 * (ks * MT + m), 4),
                                             v(acc[m][t], 4) if (ks or cinit) else '0'))
        for ks in range(NK + 1):
            if ks < NK:
                if ks % CK == 0:
                    c = ks // CK
                    if c == 0: k.stamp(3)
                    k.barrier(vm=toks[c])
                    if c < 5: k.stamp(4 + c)
                    if kind != 'k7' and c == 0: k.cstamp(9)
                    if kind != 'k7' and c == 4: k.cstamp(10)
                    elif c in (8, 11, 13): k.stamp({8: 9, 11: 10, 13: 11}[c])
                    if c >= 1 and c - 1 + SLOTS < NCH:
                        issue(c - 1 + SLOTS)
                reads(ks)
            if ks:
                mfmas(ks - 1)
        k.stamp(12)
        if kind == 'k5' or kind == 'k7':
            P = R1
            for p in range(NP):
                for r in range(4):
                    k('v_cvt_pk_bf16_f32 %s, %s, %s' % (v(P + 4 * p + r), v(acc[0][2 * p] + r), v(acc[0][2 * p + 1] + r)))
            for r in range(2):
                k('v_cvt_pk_bf16_f32 %s, %s, %s' % (v(P + 4 * NP + r), v(acc[0][NT - 1] + 2 * r), v(acc[0][NT - 1] + 2 * r + 1)))
        if kind == 'k5':
            srd_ws(k, 12, 16, 'X1')
            for p in range(NP):
                k('buffer_store_dwordx4 %s, %s, s[12:15], %s offen' % (v(P + 4 * p, 4), v(ao), s(32 + p)))
            k('buffer_store_dwordx2 %s, %s, s[12:15], s35 offen' % (v(P + 4 * NP, 2), v(ho)))
            sm = va(2, 2)
            t2 = va()
            k('s_mov_b32 s37, 0x3f803f80')
            k('v_mov_b32 %s, 0' % v(sm))
            k('v_mov_b32 %s, 0' % v(sm + 1))
            for d in range(10):
                k('v_dot2_f32_bf16 %s, %s, s37, %s' % (v(sm), v(P + d), v(sm)))
                k('v_dot2_f32_bf16 %s, %s, %s, %s' % (v(sm + 1), v(P + d), v(P + d), v(sm + 1)))
            qsum(k, sm, tmp)
            qsum(k, sm + 1, t2)
            srd_ws(k, 8, 16, 'ST1')
            k('s_lshl_b32 s37, s22, 3')
            k('s_add_u32 s37, s37, s23')
            k('v_lshlrev_b32 %s, 30, %s' % (v(tmp), v(tq)))
            k('v_lshrrev_b32 %s, 2, %s' % (v(tmp), v(tmp)))
            k('v_lshl_add_u32 %s, %s, 6, %s' % (v(tmp), v(ti), v(tmp)))
            k('buffer_store_dwordx2 %s, %s, s[8:11], s37 offen' % (v(sm, 2), v(tmp)))
        elif kind == 'k7':
            srd_from(k, 12, 40, 0, S * D * 2)
            k('v_mul_u32_u24 %s, 1280, %s' % (v(tmp), v(ti)))
            k('v_lshl_add_u32 %s, %s, 4, %s' % (v(ao), v(tq), v(tmp)))
            k('v_lshl_add_u32 %s, %s, 3, %s' % (v(ho), v(tq), v(tmp)))
            k('s_mul_i32 s37, s23, 20')
            k('s_lshl_b32 s38, s27, 6')
            k('s_add_u32 s38, s38, s37')
            k('s_lshl_b32 s39, s28, 6')
            k('s_add_u32 s39, s39, s37')
            k('s_add_u32 s39, s39, s29')
            for p in range(NP):
                k('buffer_store_dwordx4 %s, %s, s[12:15], s38 offen offset:%d' % (v(P + 4 * p, 4), v(ao), 64 * p))
            k('buffer_store_dwordx2 %s, %s, s[12:15], s39 offen' % (v(P + 4 * NP, 2), v(ho)))
        else:
            srd_ws(k, 12, 16, 'G')
            T = WB[0][0]
            g2 = va()
            k('s_mov_b32 s37, 0x%x' % f32_bits(G1))
            k('v_mov_b32 %s, 0x%x' % (v(g2), f32_bits(G2)))
            pk = [WB[1][n] for n in range(4)]
            n = 0
            for m in range(MT):
                for p in range(NP + 1):
                    tiles = [2 * p, 2 * p + 1] if p < NP else [NT - 1]
                    xs = [acc[m][t] + r for t in tiles for r in range(4)]
                    cs = [CS + 4 * t + r for t in tiles for r in range(4)]
                    for x_, c_ in zip(xs, cs):
                        k('v_mul_f32 %s, %s, %s' % (v(x_), v(x_), v(RS + m)))
                    for x_, c_ in zip(xs, cs):
                        k('v_fma_f32 %s, -%s, %s, %s' % (v(x_), v(c_), v(MR + m), v(x_)))
                    gelu(k, xs, [T + i for i in range(len(xs))], 's37', g2)
                    Pp = pk[n % 4]
                    n += 1
                    if p < NP:
                        for r in range(4):
                            k('v_cvt_pk_bf16_f32 %s, %s, %s' % (v(Pp + r), v(xs[r]), v(xs[4 + r])))
                        k('buffer_store_dwordx4 %s, %s, s[12:15], %s offen offset:%d' % (v(Pp, 4), v(ao), s(32 + p), m * 1024))
                    else:
                        for r in range(2):
                            k('v_cvt_pk_bf16_f32 %s, %s, %s' % (v(Pp + r), v(xs[2 * r]), v(xs[2 * r + 1])))
                        k('buffer_store_dwordx2 %s, %s, s[12:15], s35 offen offset:%d' % (v(Pp, 2), v(ho), m * 1024))
        k.end()
    return fn
```

```python
from common import *

def k1_tables():
    lane = np.arange(64)
    i, q = lane % 16, lane // 16
    j = np.arange(8)
    a_ = 5 * q[:, None] + j[None, :]
    valid = (j[None, :] < 5) & (i[:, None] <= 10)
    th = 2 * np.pi * a_ * i[:, None] / 20
    f20r = np.where(valid, np.cos(th), 0)
    f20i = np.where(valid, -np.sin(th), 0)
    b_ = 8 * q[:, None] + j[None, :]
    fr, fi = [], []
    for ct in range(2):
        c = 16 * ct + i[:, None]
        th = 2 * np.pi * ((b_ * c) % 32) / 32
        fr.append(np.cos(th))
        fi.append(-np.sin(th))
    frags = [f20r, f20i, fr[0], -fi[0], fi[0], fr[1], -fi[1], -fr[1]]
    words = [pack_frag(f) for f in frags]
    sc = np.where((i == 0) | (i == 10), 1.0, 2.0) / (S * D)
    for t in range(2):
        r = np.arange(4)
        b = 8 * q[:, None] + 2 * r[None, :] + t
        th = 2 * np.pi * b * i[:, None] / 640
        words.append(f32_bits(np.cos(th) * sc[:, None]))
        words.append(f32_bits(np.sin(th) * sc[:, None]))
    return np.concatenate([w.ravel() for w in words])


def rnd_bf16(k, d, x):
    k('v_cvt_pk_bf16_f32 %s, %s, %s' % (v(d), v(x), v(x)))
    k('v_lshlrev_b32 %s, 16, %s' % (v(d), v(d)))


def emit_fft_role(k):
    va = Alloc(1)
    sx, st, so = 4, 8, 12
    sws = 16
    k.stamp(0)
    k('s_load_dwordx2 s[4:5], s[0:1], %d' % KA['x'])
    k('s_load_dwordx2 s[16:17], s[0:1], %d' % KA['ws'])
    srd_table(k, st, 'k1_tab', 12 * 1024)
    lane, ti, tq, xo, l16 = va(), va(), va(), va(), va()
    k('v_and_b32 %s, 63, v0' % v(lane))
    k('v_lshrrev_b32 %s, 6, v0' % v(ti))
    k('v_lshlrev_b32 %s, 4, %s' % (v(l16), v(lane)))
    k('v_readfirstlane_b32 s20, %s' % v(ti))
    k('v_and_b32 %s, 15, v0' % v(ti))
    k('v_lshrrev_b32 %s, 4, %s' % (v(tq), v(lane)))
    T = va(48, 4)
    for f in range(12):
        if f % 4 == 0 and f:
            k('s_movk_i32 s21, 0x%x' % (f * 1024))
        k('buffer_load_dwordx4 %s, %s, %s, %s offen offset:%d' % (v(T + 4 * f, 4), v(l16), s(st, 4), 's21' if f >= 4 else '0', (f % 4) * 1024))
    F20R, F20I = T, T + 4
    A = [T + 8 + 4 * n for n in range(6)]
    TC = [T + 32, T + 40]
    TS = [T + 36, T + 44]
    k('v_mul_u32_u24 %s, 320, %s' % (v(xo), v(tq)))
    k('v_lshl_add_u32 %s, %s, 2, %s' % (v(xo), v(ti), v(xo)))
    k('s_lshr_b32 s22, s2, 3')
    k('s_and_b32 s23, s2, 7')
    k('s_lshl_b32 s23, s23, 3')
    k('s_lshl_b32 s24, s20, 1')
    k('s_add_u32 s23, s23, s24')
    k('s_lshl_b32 s23, s23, 5')
    k('s_add_u32 s23, s23, s22')
    k('s_mul_i32 s24, s23, 1280')
    k('s_add_u32 s25, s24, %d' % (32 * 1280))
    k('s_mov_b32 s6, 0x%x' % (S * D * 2))
    k('s_mov_b32 s7, 0x00020000')
    X = [va(5), va(5)]
    for row in range(2):
        for m in range(5):
            k('buffer_load_dword %s, %s, %s, %s offen offset:%d' % (v(X[row] + m), v(xo), s(sx, 4), s(24 + row), 64 * m))
    k.stamp(1)
    srd_ws(k, so, sws, 'XB')
    b0, b1, ce = va(), va(), va()
    tmp = va()
    k('v_mul_u32_u24 %s, 80, %s' % (v(tmp), v(tq)))
    k('v_add_u32 %s, %s, %s' % (v(tmp), v(tmp), v(ti)))
    k('s_lshl_b32 s26, s20, 3')
    k('v_mov_b32 %s, s26' % v(b1))
    k('v_mad_u32_u24 %s, %s, 40, %s' % (v(b0), v(tmp), v(b1)))
    k('v_sub_u32 %s, 260, %s' % (v(tmp), v(tmp)))
    k('v_mad_u32_u24 %s, %s, 40, %s' % (v(b1), v(tmp), v(b1)))
    k('v_cmp_lt_u32 vcc, 10, %s' % v(ti))
    k('v_mov_b32 %s, 13312' % v(tmp))
    k('v_cndmask_b32 %s, %s, %s, vcc' % (v(b0), v(b0), v(tmp)))
    k('v_cndmask_b32 %s, %s, %s, vcc' % (v(b1), v(b1), v(tmp)))
    k('v_cmp_eq_u32 vcc, 0, %s' % v(ti))
    k('v_mov_b32 %s, 0xc1a00000' % v(tmp))
    k('v_cndmask_b32 %s, 0, %s, vcc' % (v(ce), v(tmp)))
    k('s_mov_b32 s27, 0x3f803f80')
    k('s_mov_b32 s28, 0x05040100')
    k('s_mov_b32 s29, 0x07060302')
    k('s_mov_b32 s30, 0xffff')
    AF = [[va(4, 4), va(4, 4)], [va(4, 4), va(4, 4)]]
    st4 = va(4)
    for row in range(2):
        for t in range(2):
            k('v_mov_b32 %s, 0' % v(AF[row][t] + 3))
    for n in range(4):
        k('v_mov_b32 %s, 0' % v(st4 + n))
    D1 = [[[va(4, 4), va(4, 4)] for t in range(2)] for row in range(2)]
    for row in range(2):
        x = X[row]
        for t in range(2):
            sel = 's28' if t == 0 else 's29'
            k('v_perm_b32 %s, %s, %s, %s' % (v(AF[row][t]), v(x + 1), v(x), sel))
            k('v_perm_b32 %s, %s, %s, %s' % (v(AF[row][t] + 1), v(x + 3), v(x + 2), sel))
            if t == 0:
                k('v_and_b32 %s, s30, %s' % (v(AF[row][t] + 2), v(x + 4)))
            else:
                k('v_lshrrev_b32 %s, 16, %s' % (v(AF[row][t] + 2), v(x + 4)))
        for m in range(5):
            k('v_dot2_f32_bf16 %s, %s, s27, %s' % (v(st4 + 2 * row), v(x + m), v(st4 + 2 * row)))
            k('v_dot2_f32_bf16 %s, %s, %s, %s' % (v(st4 + 2 * row + 1), v(x + m), v(x + m), v(st4 + 2 * row + 1)))
    for row in range(2):
        for t in range(2):
            k('%s %s, %s, %s, 0' % (MFMA, v(D1[row][t][0], 4), v(AF[row][t], 4), v(F20R, 4)))
            k('%s %s, %s, %s, 0' % (MFMA, v(D1[row][t][1], 4), v(AF[row][t], 4), v(F20I, 4)))
    k.stamp(2)
    s0, q0, s1, q1 = st4, st4 + 1, st4 + 2, st4 + 3
    k('v_permlane32_swap_b32 %s, %s' % (v(s0), v(q0)))
    k('v_permlane32_swap_b32 %s, %s' % (v(s1), v(q1)))
    k('v_add_f32 %s, %s, %s' % (v(s0), v(s0), v(q0)))
    k('v_add_f32 %s, %s, %s' % (v(s1), v(s1), v(q1)))
    k('v_permlane16_swap_b32 %s, %s' % (v(s0), v(s1)))
    k('v_add_f32 %s, %s, %s' % (v(s0), v(s0), v(s1)))
    for m in ('quad_perm:[1,0,3,2]', 'quad_perm:[2,3,0,1]', 'row_half_mirror', 'row_mirror'):
        k('v_add_f32_dpp %s, %s, %s %s row_mask:0xf bank_mask:0xf' % (v(s0), v(s0), v(s0), m))
    k('v_mov_b32 %s, %s' % (v(q0), v(s0)))
    k('v_permlane32_swap_b32 %s, %s' % (v(s0), v(q0)))
    k('v_mul_f32 %s, 0x3acccccd, %s' % (v(s0), v(s0)))
    k('v_mul_f32 %s, 0x3acccccd, %s' % (v(q0), v(q0)))
    k('v_fma_f32 %s, -%s, %s, %s' % (v(q0), v(s0), v(s0), v(q0)))
    k('v_max_f32 %s, 0, %s' % (v(q0), v(q0)))
    rnd_bf16(k, q0, q0)
    rnd_bf16(k, s0, s0)
    k('v_add_f32 %s, 0x3727c5ac, %s' % (v(q0), v(q0)))
    rnd_bf16(k, q0, q0)
    k('v_sqrt_f32 %s, %s' % (v(q0), v(q0)))
    rnd_bf16(k, q0, q0)
    k('v_rcp_f32 %s, %s' % (v(q0), v(q0)))
    k('v_mul_f32 %s, %s, %s' % (v(s0), v(s0), v(q0)))
    k('v_readlane_b32 s32, %s, 0' % v(q0))
    k('v_readlane_b32 s34, %s, 16' % v(q0))
    k('v_readlane_b32 s36, %s, 0' % v(s0))
    k('v_readlane_b32 s37, %s, 16' % v(s0))
    add = [va(2), va(2)]
    for row in range(2):
        k('v_mul_f32 %s, %s, %s' % (v(add[row]), s(36 + row), v(ce)))
    BR = [va(4, 4), va(4, 4)]
    BI = [va(4, 4), va(4, 4)]
    t1, t2 = va(4), va(4)
    for row in range(2):
        sr = s(32 + 2 * row, 2)
        for t in range(2):
            dr, di = D1[row][t]
            for h in (0, 2):
                k('v_pk_fma_f32 %s, %s, %s, %s op_sel_hi:[1,0,0]' % (v(dr + h, 2), v(dr + h, 2), sr, v(add[row], 2)))
                k('v_pk_mul_f32 %s, %s, %s op_sel_hi:[1,0]' % (v(di + h, 2), v(di + h, 2), sr))
            for h in (0, 2):
                k('v_pk_mul_f32 %s, %s, %s' % (v(t1 + h, 2), v(di + h, 2), v(TS[t] + h, 2)))
                k('v_pk_mul_f32 %s, %s, %s' % (v(t2 + h, 2), v(dr + h, 2), v(TS[t] + h, 2)))
            for h in (0, 2):
                k('v_pk_fma_f32 %s, %s, %s, %s' % (v(dr + h, 2), v(dr + h, 2), v(TC[t] + h, 2), v(t1 + h, 2)))
                k('v_pk_fma_f32 %s, %s, %s, %s neg_lo:[0,0,1] neg_hi:[0,0,1]' % (v(di + h, 2), v(di + h, 2), v(TC[t] + h, 2), v(t2 + h, 2)))
        for r in range(4):
            k('v_cvt_pk_bf16_f32 %s, %s, %s' % (v(BR[row] + r), v(D1[row][0][0] + r), v(D1[row][1][0] + r)))
            k('v_cvt_pk_bf16_f32 %s, %s, %s' % (v(BI[row] + r), v(D1[row][0][1] + r), v(D1[row][1][1] + r)))
    D2 = [[[va(4, 4), va(4, 4)] for ct in range(2)] for row in range(2)]
    for row in range(2):
        for ct in range(2):
            ar = (A[0], A[1], A[2], A[0]) if ct == 0 else (A[3], A[4], A[4], A[5])
            o_r, o_i = D2[row][ct]
            k('%s %s, %s, %s, 0' % (MFMA, v(o_r, 4), v(ar[0], 4), v(BR[row], 4)))
            k('%s %s, %s, %s, 0' % (MFMA, v(o_i, 4), v(ar[2], 4), v(BR[row], 4)))
            k('%s %s, %s, %s, %s' % (MFMA, v(o_r, 4), v(ar[1], 4), v(BI[row], 4), v(o_r, 4)))
            k('%s %s, %s, %s, %s' % (MFMA, v(o_i, 4), v(ar[3], 4), v(BI[row], 4), v(o_i, 4)))
    k.stamp(3)
    ra, ga, ga2 = va(), va(), va()
    k('v_and_b32 %s, 1, v0' % v(tmp))
    k('v_mul_u32_u24 %s, 20, v0' % v(ra))
    k('v_lshlrev_b32 %s, 2, %s' % (v(tmp), v(tmp)))
    k('v_sub_u32 %s, %s, %s' % (v(ra), v(ra), v(tmp)))
    k('v_lshlrev_b32 %s, 4, v0' % v(ga))
    k('v_cmp_gt_u32 vcc, 130, v0')
    k('v_mov_b32 %s, 0x40000000' % v(tmp))
    k('v_cndmask_b32 %s, %s, %s, vcc' % (v(ga2), v(tmp), v(ga)))
    k('s_mul_i32 s40, s2, %d' % BLK)
    k('s_add_u32 s41, s40, 4096')
    k('s_add_u32 s42, s40, 8192')
    P = va(16, 2)
    for ct in range(2):
        for r in range(4):
            for row in range(2):
                k('v_cvt_pk_bf16_f32 %s, %s, %s' % (v(P + 8 * ct + 2 * r + row), v(D2[row][ct][0] + r), v(D2[row][ct][1] + r)))
            off = 800 * r if ct == 0 else 800 * (3 - r)
            k('ds_write_b64 %s, %s offset:%d' % (v(b0 if ct == 0 else b1), v(P + 8 * ct + 2 * r, 2), off))
    k.barrier()
    k.stamp(4)
    R = va(12, 4)
    for r in range(3):
        if r == 0:
            k('ds_read2_b64 %s, %s offset0:0 offset1:1' % (v(R, 4), v(ra)))
        else:
            k('v_add_u32 %s, %d, %s' % (v(ra), 5120, v(ra)))
            k('ds_read2_b64 %s, %s offset0:0 offset1:1' % (v(R + 4 * r, 4), v(ra)))
    for r in range(3):
        k('buffer_store_dwordx4 %s, %s, %s, %s offen' % (v(R + 4 * r, 4), v(ga if r < 2 else ga2), s(so, 4), s(40 + r)))
    k.end()


def emit_wt_role(k, wg0):
    va = Alloc(1)
    k.stamp(0)
    k('s_load_dwordx2 s[4:5], s[0:1], %d' % KA['wr'])
    k('s_load_dwordx2 s[8:9], s[0:1], %d' % KA['wi'])
    k('s_load_dwordx2 s[16:17], s[0:1], %d' % KA['ws'])
    k('s_sub_u32 s3, s2, %d' % wg0)
    k('s_lshr_b32 s20, s3, 2')
    k('s_and_b32 s21, s3, 3')
    k('s_lshl_b32 s21, s21, 9')
    k('s_add_u32 s20, s20, s21')
    k('s_mul_i32 s20, s20, 642')
    for j in range(1, 4):
        k('s_add_u32 %s, s20, %d' % (s(20 + j), j * 64 * 642))
    k('s_mul_i32 s24, s3, %d' % BLK)
    lo, so, idx, tmp, big = va(3), va(3), va(), va(), va()
    k('v_mov_b32 %s, 0x40000000' % v(big))
    for r in range(3):
        k('v_add_u32 %s, %d, v0' % (v(idx), 256 * r))
        k('v_subrev_u32 %s, 321, %s' % (v(tmp), v(idx)))
        k('v_cmp_gt_u32 vcc, 321, %s' % v(idx))
        k('v_cndmask_b32 %s, %s, %s, vcc' % (v(tmp), v(tmp), v(idx)))
        k('v_lshlrev_b32 %s, 1, %s' % (v(lo + r), v(tmp)))
        k('v_lshlrev_b32 %s, 5, %s' % (v(so + r), v(tmp)))
        k('v_add_u32 %s, 0x%x, %s' % (v(tmp), 256 * 642, v(lo + r)))
        k('v_cndmask_b32 %s, %s, %s, vcc' % (v(lo + r), v(tmp), v(lo + r)))
        k('v_add_u32 %s, 16, %s' % (v(tmp), v(so + r)))
        k('v_cndmask_b32 %s, %s, %s, vcc' % (v(so + r), v(tmp), v(so + r)))
        if r == 2:
            k('v_cmp_gt_u32 vcc, 642, %s' % v(idx))
            k('v_cndmask_b32 %s, %s, %s, vcc' % (v(lo + r), v(big), v(lo + r)))
            k('v_cndmask_b32 %s, %s, %s, vcc' % (v(so + r), v(big), v(so + r)))
    k('s_mov_b32 s6, 0x%x' % (S * DF * 2))
    k('s_mov_b32 s7, 0x00020000')
    k('s_mov_b32 s10, 0x%x' % (S * DF * 2))
    k('s_mov_b32 s11, 0x00020000')
    R = va(12, 4)
    R2 = va(12, 4)
    for r in range(3):
        for j in range(4):
            k('buffer_load_ushort %s, %s, s[4:7], %s offen' % (v(R + 4 * r + j), v(lo + r), s(20 + j)))
            k('buffer_load_ushort %s, %s, s[8:11], %s offen' % (v(R2 + 4 * r + j), v(lo + r), s(20 + j)))
    k.stamp(1)
    srd_ws(k, 12, 16, 'WB')
    for r in range(3):
        for j in range(4):
            k('v_lshl_or_b32 %s, %s, 16, %s' % (v(R + 4 * r + j), v(R2 + 4 * r + j), v(R + 4 * r + j)))
        k('buffer_store_dwordx4 %s, %s, s[12:15], s24 offen' % (v(R + 4 * r, 4), v(so + r)))
    k.end()
```

```python
from common import *

def cs_frag(th):
    re = np.stack([np.cos(th), np.sin(th)], -1).reshape(64, 8)
    im = np.stack([-np.sin(th), np.cos(th)], -1).reshape(64, 8)
    return pack_frag(re), pack_frag(im)

def k2_tables():
    lane = np.arange(64)
    i, q = lane % 16, lane // 16
    jj = np.arange(4)
    words = []
    for tp in range(2):
        for t in range(2):
            f2 = 16 * tp + i[:, None]
            n2 = 16 * t + 4 * q[:, None] + jj[None, :]
            re, im = cs_frag(2 * np.pi * ((f2 * n2) % 32) / 32)
            words += [re, im]
    for w in range(4):
        f1 = 16 * w + i[:, None]
        for ks in range(4):
            n1 = 16 * ks + 4 * q[:, None] + jj[None, :]
            re, im = cs_frag(2 * np.pi * ((f1 * n1) % 64) / 64)
            words += [re, im]
        for t in range(2):
            n2 = 16 * t + 4 * q[:, None] + jj[None, :]
            th = 2 * np.pi * (n2 * f1) / 2048
            words += [f32_bits(np.cos(th)), f32_bits(np.sin(th))]
    return np.concatenate([w.ravel() for w in words])

K2_LDS = 8192 + 32 * 272

def twiddle(k, dr, di, tc, ts, t1, t2):
    for h in (0, 2):
        k('v_pk_mul_f32 %s, %s, %s' % (v(t1 + h, 2), v(di + h, 2), v(ts + h, 2)))
        k('v_pk_mul_f32 %s, %s, %s' % (v(t2 + h, 2), v(dr + h, 2), v(ts + h, 2)))
    for h in (0, 2):
        k('v_pk_fma_f32 %s, %s, %s, %s' % (v(dr + h, 2), v(dr + h, 2), v(tc + h, 2), v(t1 + h, 2)))
        k('v_pk_fma_f32 %s, %s, %s, %s neg_lo:[0,0,1] neg_hi:[0,0,1]' % (v(di + h, 2), v(di + h, 2), v(tc + h, 2), v(t2 + h, 2)))

def emit_col_role(k, wg0):
    va = Alloc(1)
    done = k.newlabel('done')
    k.stamp(0)
    k('s_load_dwordx2 s[16:17], s[0:1], %d' % KA['ws'])
    k('s_and_b32 s20, s2, 7')
    k('s_lshr_b32 s21, s2, 5')
    k('s_lshl_b32 s21, s21, 3')
    k('s_add_u32 s20, s20, s21')
    k('s_lshl_b32 s20, s20, 2')
    k('s_bfe_u32 s21, s2, 0x20003')
    k('s_add_u32 s20, s20, s21')
    k('s_cmp_gt_u32 s20, 320')
    k('s_cbranch_scc1 %s' % done)
    st0 = k.save()
    srd_table(k, 8, 'k2_tab', 56 * 1024)
    lane, ti, tq, l16, tmp, xo, wo = [va() for _ in range(7)]
    k('v_and_b32 %s, 63, v0' % v(lane))
    k('v_lshrrev_b32 %s, 6, v0' % v(ti))
    k('v_lshlrev_b32 %s, 4, %s' % (v(l16), v(lane)))
    k('v_readfirstlane_b32 s21, %s' % v(ti))
    k('v_and_b32 %s, 15, v0' % v(ti))
    k('v_lshrrev_b32 %s, 4, %s' % (v(tq), v(lane)))
    k('v_lshrrev_b32 %s, 1, %s' % (v(tmp), v(tq)))
    k('v_lshl_add_u32 %s, %s, 3, %s' % (v(xo), v(ti), v(tmp)))
    k('v_lshl_add_u32 %s, %s, 2, %s' % (v(wo), v(ti), v(tmp)))
    k('v_mul_u32_u24 %s, %d, %s' % (v(xo), BLK, v(xo)))
    k('v_mul_u32_u24 %s, %d, %s' % (v(wo), BLK, v(wo)))
    k('v_and_b32 %s, 16, v0' % v(tmp))
    k('v_add_u32 %s, %s, %s' % (v(xo), v(xo), v(tmp)))
    k('v_add_u32 %s, %s, %s' % (v(wo), v(wo), v(tmp)))
    k('s_lshl_b32 s22, s20, 5')
    k('s_lshr_b32 s23, s21, 1')
    k('s_lshl_b32 s23, s23, 7')
    k('s_and_b32 s24, s21, 1')
    k('s_lshl_b32 s24, s24, 2')
    k('s_add_u32 s23, s23, s24')
    k('s_mul_i32 s23, s23, %d' % BLK)
    k('s_add_u32 s23, s23, s22')
    k('s_add_u32 s24, s23, %d' % (2 * BLK))
    k('s_mul_i32 s25, s21, %d' % (64 * BLK))
    k('s_add_u32 s25, s25, s22')
    k('s_add_u32 s26, s25, %d' % (2 * BLK))
    k('s_lshl_b32 s27, s21, 11')
    k('s_mul_i32 s28, s21, %d' % (12 * 1024))
    k('s_add_u32 s28, s28, %d' % (8 * 1024))
    k('s_add_u32 s29, s28, 4096')
    k('s_add_u32 s30, s28, 8192')
    k('s_movk_i32 s31, 4096')
    srd_ws(k, 4, 16, 'XB')
    srd_ws(k, 12, 16, 'WB')
    k('s_mov_b32 m0, s27')
    k('buffer_load_dwordx4 %s, s[4:7], s23 offen lds' % v(xo))
    k('s_add_u32 m0, s27, 1024')
    tok = k.op('buffer_load_dwordx4 %s, s[4:7], s24 offen lds' % v(xo))
    B = va(32, 4)
    TW = va(16, 4)
    G = va(32, 4)
    Wv = va(8, 4)
    for f in range(8):
        k('buffer_load_dwordx4 %s, %s, s[8:11], %s offen offset:%d' % (v(B + 4 * f, 4), v(l16), s(28 + f // 4), (f % 4) * 1024))
    for f in range(4):
        k('buffer_load_dwordx4 %s, %s, s[8:11], s30 offen offset:%d' % (v(TW + 4 * f, 4), v(l16), f * 1024))
    for f in range(8):
        k('buffer_load_dwordx4 %s, %s, s[8:11], %s offen offset:%d' % (v(G + 4 * f, 4), v(l16), 's31' if f >= 4 else '0', (f % 4) * 1024))
    for t in range(2):
        k('buffer_load_dwordx4 %s, %s, s[12:15], %s offen' % (v(Wv + 4 * t, 4), v(wo), s(25 + t)))
    B1 = [B + 8 * ks for ks in range(4)]
    B2 = [B + 8 * ks + 4 for ks in range(4)]
    TC = [TW, TW + 8]
    TS = [TW + 4, TW + 12]
    Gr = lambda tp, t: G + 8 * (2 * tp + t)
    Gi = lambda tp, t: G + 8 * (2 * tp + t) + 4
    wa, ra, za = va(), va(), va()
    k('v_mul_u32_u24 %s, %d, %s' % (v(wa), 4 * 272, v(tq)))
    k('v_lshl_add_u32 %s, %s, 2, %s' % (v(wa), v(ti), v(wa)))
    k('s_lshl_b32 s32, s21, 6')
    k('s_add_u32 s32, s32, 8192')
    k('v_add_u32 %s, s32, %s' % (v(wa), v(wa)))
    k('v_mul_u32_u24 %s, 272, %s' % (v(ra), v(ti)))
    k('v_lshl_add_u32 %s, %s, 4, %s' % (v(ra), v(tq), v(ra)))
    k('v_lshlrev_b32 %s, 7, %s' % (v(za), v(ti)))
    k('v_lshl_add_u32 %s, %s, 4, %s' % (v(za), v(tq), v(za)))
    k('s_lshl_b32 s33, s20, 13')
    k('s_add_u32 s33, s33, s27')
    srd_ws(k, 4, 16, 'Z')
    k('s_mov_b32 s34, 0xffff0000')
    k.stamp(1)
    k.barrier(vm=tok)
    k.stamp(2)
    U = va(32, 4)
    for f in range(8):
        k('ds_read_b128 %s, %s offset:%d' % (v(U + 4 * f, 4), v(l16), f * 1024))
    D1 = [[va(4, 4), va(4, 4)] for t in range(2)]
    def big(Dst, Af):
        for t in range(2):
            for ks in range(4):
                for c, Bc in enumerate((B1, B2)):
                    k('%s %s, %s, %s, %s' % (MFMA, v(Dst[t][c], 4), v(Af + 16 * t + 4 * ks, 4), v(Bc[ks], 4), v(Dst[t][c], 4) if ks else '0'))
    big(D1, U)
    k.stamp(3)
    WR, WI = va(8, 2), va(8, 2)
    for n in range(8):
        k('v_lshlrev_b32 %s, 16, %s' % (v(WR + n), v(Wv + n)))
        k('v_and_b32 %s, s34, %s' % (v(WI + n), v(Wv + n)))
    t1, t2 = va(4, 2), va(4, 2)
    Bf = [va(4, 4), va(4, 4)]
    for t in range(2):
        twiddle(k, D1[t][0], D1[t][1], TC[t], TS[t], t1, t2)
        for r in range(4):
            k('v_cvt_pk_bf16_f32 %s, %s, %s' % (v(Bf[t] + r), v(D1[t][0] + r), v(D1[t][1] + r)))
    D2 = [[va(4, 4), va(4, 4)] for t in range(2)]
    def small(Dst, Bsrc):
        for tp in range(2):
            for t in range(2):
                k('%s %s, %s, %s, %s' % (MFMA, v(Dst[tp][0], 4), v(Gr(tp, t), 4), v(Bsrc[t], 4), v(Dst[tp][0], 4) if t else '0'))
                k('%s %s, %s, %s, %s' % (MFMA, v(Dst[tp][1], 4), v(Gi(tp, t), 4), v(Bsrc[t], 4), v(Dst[tp][1], 4) if t else '0'))
    small(D2, Bf)
    k.stamp(4)
    Bf2 = [va(4, 4), va(4, 4)]
    for t in range(2):
        xr, xi = D2[t]
        for h in (0, 2):
            k('v_pk_mul_f32 %s, %s, %s' % (v(t1 + h, 2), v(xi + h, 2), v(WI + 4 * t + h, 2)))
            k('v_pk_mul_f32 %s, %s, %s' % (v(t2 + h, 2), v(xi + h, 2), v(WR + 4 * t + h, 2)))
        for h in (0, 2):
            k('v_pk_fma_f32 %s, %s, %s, %s neg_lo:[0,1,1] neg_hi:[0,1,1]' % (v(xi + h, 2), v(xr + h, 2), v(WI + 4 * t + h, 2), v(t2 + h, 2)))
            k('v_pk_fma_f32 %s, %s, %s, %s neg_lo:[0,0,1] neg_hi:[0,0,1]' % (v(xr + h, 2), v(xr + h, 2), v(WR + 4 * t + h, 2), v(t1 + h, 2)))
        for r in range(4):
            k('v_cvt_pk_bf16_f32 %s, %s, %s' % (v(Bf2[t] + r), v(xr + r), v(xi + r)))
    small(D1, Bf2)
    k.stamp(5)
    for t in range(2):
        twiddle(k, D1[t][0], D1[t][1], TC[t], TS[t], t1, t2)
        for r in range(4):
            k('v_cvt_pk_bf16_f32 %s, %s, %s' % (v(Bf[t] + r), v(D1[t][0] + r), v(D1[t][1] + r)))
            k('ds_write_b32 %s, %s offset:%d' % (v(wa), v(Bf[t] + r), (16 * t + r) * 272))
    k.barrier()
    k.stamp(6)
    for t in range(2):
        for ks in range(4):
            k('ds_read_b128 %s, %s offset:%d' % (v(U + 16 * t + 4 * ks, 4), v(ra), 8192 + t * 4352 + ks * 64))
    big(D2, U)
    for t in range(2):
        for r in range(4):
            k('v_cvt_pk_bf16_f32 %s, %s, %s' % (v(Bf2[t] + r), v(D2[t][0] + r), v(D2[t][1] + r)))
        k('buffer_store_dwordx4 %s, %s, s[4:7], s33 offen offset:%d' % (v(Bf2[t], 4), v(za), t * 64))
    k.label(done)
    k.end()
```

```python
from common import *
from k1 import rnd_bf16
from k2 import twiddle
from gemm import gelu, G1, G2

def k3_tables():
    lane = np.arange(64)
    i, q = lane % 16, lane // 16
    jj = np.arange(4)
    words = []
    def fr(x0, x1):
        return pack_frag(np.stack([x0, x1], -1).reshape(64, 8))
    for ks in range(2):
        c = (4 * q[:, None] + jj[None, :]) if ks == 0 else (19 + 4 * q[:, None] - jj[None, :])
        sg = 1 if ks == 0 else -1
        for bt in range(2):
            b = 2 * i[:, None] + bt
            th = 2 * np.pi * ((b * c) % 32) / 32
            words += [fr(np.cos(th), sg * np.sin(th)), fr(-np.sin(th), sg * np.cos(th))]
    e = 4 * q[:, None] + jj[None, :]
    for bt in range(2):
        th = 2 * np.pi * ((2 * i[:, None] + bt) * e) / 640
        words += [f32_bits(np.cos(th)), f32_bits(np.sin(th))]
    for at in range(2):
        a_ = 5 * (i // 4) + (i % 4 if at == 0 else 4)
        ok = (e <= 10) & ((at == 0) | (i % 4 == 0))[:, None]
        th = 2 * np.pi * ((a_[:, None] * e) % 20) / 20
        words.append(fr(np.where(ok, np.cos(th), 0), np.where(ok, np.sin(th), 0)))
    return np.concatenate([w.ravel() for w in words])

ZT, TAB = 0, 48 * 1024
AT = TAB + 16 * 1024
KBS = 2112
K3_LDS = AT + 20 * KBS
NPRE = 7

def emit_k3(k, wg0):
    va = Alloc(1, 172)
    k.stamp(0)
    k('s_load_dwordx2 s[16:17], s[0:1], %d' % KA['ws'])
    k('s_load_dwordx2 s[12:13], s[0:1], %d' % KA['x'])
    srd_table(k, 8, 'k3_tab', 14 * 1024)
    ti, tq, l16, zo, tmp, xo = [va() for _ in range(6)]
    k('v_lshrrev_b32 %s, 6, v0' % v(ti))
    k('v_and_b32 %s, 63, v0' % v(l16))
    k('v_readfirstlane_b32 s20, %s' % v(ti))
    k('v_lshrrev_b32 %s, 4, %s' % (v(tq), v(l16)))
    k('v_and_b32 %s, 15, v0' % v(ti))
    k('v_bfe_u32 %s, v0, 4, 3' % v(tmp))
    k('v_xor_b32 %s, %s, v0' % (v(tmp), v(tmp)))
    k('v_and_b32 %s, 7, %s' % (v(tmp), v(tmp)))
    k('v_lshrrev_b32 %s, 3, %s' % (v(zo), v(l16)))
    k('v_lshlrev_b32 %s, 13, %s' % (v(zo), v(zo)))
    k('v_lshl_add_u32 %s, %s, 4, %s' % (v(zo), v(tmp), v(zo)))
    k('v_lshlrev_b32 %s, 4, %s' % (v(l16), v(l16)))
    k('s_lshr_b32 s21, s2, 5')
    k('s_lshl_b32 s21, s21, 3')
    k('s_and_b32 s22, s2, 7')
    k('s_add_u32 s21, s21, s22')
    k('s_bfe_u32 s22, s2, 0x20003')
    k('s_lshl_b32 s23, s21, 7')
    k('s_lshl_b32 s24, s20, 16')
    k('s_add_u32 s23, s23, s24')
    k('s_lshl_b32 s24, s20, 10')
    k('s_lshl_b32 s25, s20, 11')
    srd_ws(k, 4, 16, 'Z')
    for m in range(6):
        k('s_add_u32 m0, s24, %d' % (ZT + m * 8192))
        k('buffer_load_dwordx4 %s, s[4:7], s23 offen lds' % v(zo))
        if m < 5:
            k('s_add_u32 s23, s23, %d' % (64 * 8192))
    k('s_add_u32 m0, s25, %d' % TAB)
    k('buffer_load_dwordx4 %s, s[8:11], s25 offen lds' % v(l16))
    tok = k.op('buffer_load_dwordx4 %s, s[8:11], s25 offen offset:1024 lds' % v(l16))
    k('v_mul_u32_u24 %s, 320, %s' % (v(xo), v(tq)))
    k('v_lshl_add_u32 %s, %s, 2, %s' % (v(xo), v(ti), v(xo)))
    k('s_lshl_b32 s26, s21, 3')
    k('s_add_u32 s26, s26, s20')
    k('s_mul_i32 s27, s26, 5120')
    k('s_add_u32 s28, s27, 2560')
    k('s_mov_b32 s14, 0x%x' % (S * D * 2))
    k('s_mov_b32 s15, 0x00020000')
    X = [va(5) for r in range(4)]
    for r in range(4):
        for m in range(5):
            k('buffer_load_dword %s, %s, s[12:15], %s offen offset:%d' % (v(X[r] + m), v(xo), s(27 + r // 2), (r % 2) * 1280 + 64 * m))
    k('s_and_b32 s29, s20, 3')
    k('s_lshr_b32 s30, s20, 2')
    k('s_lshl_b32 s31, s22, 1')
    k('s_add_u32 s31, s31, s30')
    k('s_mul_i32 s31, s31, 100')
    k('s_and_b32 s33, s29, 1')
    k('s_add_u32 s32, s31, s33')
    k('s_add_u32 s32, s32, 8')
    k('s_lshl_b32 s32, s32, 10')
    k('s_lshl_b32 s33, s29, 1')
    k('s_add_u32 s31, s31, s33')
    k('s_lshl_b32 s31, s31, 10')
    srd_ws(k, 4, 16, 'W1F')
    Wr = {}
    def wload(ks, regs):
        Wr[ks] = regs
        k('buffer_load_dwordx4 %s, %s, s[4:7], s31 offen' % (regs[0], v(l16)))
        k('buffer_load_dwordx4 %s, %s, s[4:7], s31 offen offset:1024' % (regs[1], v(l16)))
        k('buffer_load_dwordx4 %s, %s, s[4:7], s32 offen' % (regs[2], v(l16)))
        if ks < 9:
            k('s_add_u32 s31, s31, 10240')
            k('s_add_u32 s32, s32, 10240')
    for ks in range(NPRE):
        wload(ks, [a(12 * ks + 4 * n, 4) for n in range(3)])
    TB = va(56, 4)
    ZF = va(32, 4)
    TT = [va(16, 4), va(16, 4)]
    za = TT[0]
    kk = xo
    k('v_mul_u32_u24 %s, 80, %s' % (v(kk), v(tq)))
    k('v_add_u32 %s, %s, %s' % (v(kk), v(kk), v(ti)))
    for ks in range(2):
        if ks:
            k('v_sub_u32 %s, 260, %s' % (v(kk), v(kk)))
        for jj in range(4):
            d = za + 4 * ks + jj
            k('v_add_u32 %s, %d, %s' % (v(d), 20 * jj, v(kk)))
            k('v_bfe_u32 %s, %s, 1, 3' % (v(tmp), v(d)))
            k('v_xor_b32 %s, s20, %s' % (v(tmp), v(tmp)))
            k('v_lshlrev_b32 %s, 7, %s' % (v(d), v(d)))
            k('v_lshl_add_u32 %s, %s, 4, %s' % (v(d), v(tmp), v(d)))
    wa = va(4)
    k('v_mul_u32_u24 %s, %d, %s' % (v(wa), 5 * KBS, v(tq)))
    k('v_lshrrev_b32 %s, 2, %s' % (v(tmp), v(ti)))
    k('v_mul_u32_u24 %s, 272, %s' % (v(tmp), v(tmp)))
    k('v_add_u32 %s, %s, %s' % (v(wa), v(wa), v(tmp)))
    k('v_and_b32 %s, 3, %s' % (v(tmp), v(ti)))
    k('v_lshl_add_u32 %s, %s, 2, %s' % (v(wa), v(tmp), v(wa)))
    k('s_lshl_b32 s34, s30, 10')
    k('s_lshl_b32 s35, s29, 6')
    k('s_add_u32 s34, s34, s35')
    k('s_add_u32 s34, s34, %d' % AT)
    k('v_add_u32 %s, s34, %s' % (v(wa), v(wa)))
    for r in range(1, 4):
        k('v_xor_b32 %s, %d, %s' % (v(wa + r), 16 * r, v(wa)))
    k('s_mov_b32 s36, 0xffff0000')
    k('s_mov_b32 s37, 0x3f803f80')
    st = va(8)
    for n in range(8):
        k('v_mov_b32 %s, 0' % v(st + n))
    k.stamp(1)
    k.barrier(vm=tok)
    k.stamp(2)
    for n in range(8):
        k('ds_read_b128 %s, %s offset:%d' % (v(ZF + 4 * n, 4), v(za + n), ZT))
    for f in range(14):
        k('ds_read_b128 %s, %s offset:%d' % (v(TB + 4 * f, 4), v(l16), TAB + 1024 * f))
    for ks in range(2):
        for a_ in range(4):
            for b_ in range(a_ + 1, 4):
                k('v_swap_b32 %s, %s' % (v(ZF + 16 * ks + 4 * a_ + b_), v(ZF + 16 * ks + 4 * b_ + a_)))
    SA = lambda ks, bt, c: TB + 4 * (4 * ks + 2 * bt + c)
    TC = lambda bt: TB + 32 + 8 * bt
    TS = lambda bt: TB + 36 + 8 * bt
    SB = lambda at: TB + 48 + 4 * at
    t1, t2 = va(4, 2), va(4, 2)
    def stepA(r):
        T = TT[r % 2]
        for ks in range(2):
            for bt in range(2):
                for c in range(2):
                    d = T + 8 * bt + 4 * c
                    k('%s %s, %s, %s, %s' % (MFMA, v(d, 4), v(ZF + 16 * ks + 4 * r, 4), v(SA(ks, bt, c), 4), v(d, 4) if ks else '0'))
    def stepB(r):
        T = TT[r % 2]
        for bt in range(2):
            twiddle(k, T + 8 * bt, T + 8 * bt + 4, TC(bt), TS(bt), t1, t2)
            for n in range(4):
                k('v_cvt_pk_bf16_f32 %s, %s, %s' % (v(ZF + 16 * bt + 4 * r + n), v(T + 8 * bt + n), v(T + 8 * bt + 4 + n)))
            for m in range(5):
                k(('v_and_b32 %s, s36, %s' if bt else 'v_lshlrev_b32 %s, 16, %s') % (v(T + 8 * bt + m), v(X[r] + m)))
            for at in range(2):
                d = T + 8 * bt + 4 * at
                k('%s %s, %s, %s, %s' % (MFMA, v(d, 4), v(SB(at), 4), v(ZF + 16 * bt + 4 * r, 4), v(d, 4)))
    def pack(r):
        T = TT[r % 2]
        for m in range(5):
            k('v_cvt_pk_bf16_f32 %s, %s, %s' % (v(X[r] + m), v(T + m), v(T + 8 + m)))
    def dots(r):
        for m in range(5):
            k('v_dot2_f32_bf16 %s, %s, s37, %s' % (v(st + r), v(X[r] + m), v(st + r)))
            k('v_dot2_f32_bf16 %s, %s, %s, %s' % (v(st + 4 + r), v(X[r] + m), v(X[r] + m), v(st + 4 + r)))
    stepA(0); stepA(1); k.stamp(3); stepB(0); stepB(1); k.stamp(4)
    pack(0); stepA(2); pack(1); stepA(3)
    dots(0); dots(1)
    for ks in range(NPRE, 9):
        wload(ks, [v(TB + 12 * (ks - NPRE) + 4 * n, 4) for n in range(3)])
    stepB(2); stepB(3)
    wload(9, [v(TB + 24 + 4 * n, 4) for n in range(3)])
    pack(2); pack(3); dots(2); dots(3)
    k.stamp(5)
    for b in (st, st + 4):
        k('v_permlane32_swap_b32 %s, %s' % (v(b), v(b + 1)))
        k('v_permlane32_swap_b32 %s, %s' % (v(b + 2), v(b + 3)))
    for b in (st, st + 4):
        k('v_add_f32 %s, %s, %s' % (v(b), v(b), v(b + 1)))
        k('v_add_f32 %s, %s, %s' % (v(b + 2), v(b + 2), v(b + 3)))
    for b in (st, st + 4):
        k('v_permlane16_swap_b32 %s, %s' % (v(b), v(b + 2)))
    for b in (st, st + 4):
        k('v_add_f32 %s, %s, %s' % (v(b), v(b), v(b + 2)))
    for m in ('quad_perm:[1,0,3,2]', 'quad_perm:[2,3,0,1]', 'row_half_mirror', 'row_mirror'):
        for b in (st, st + 4):
            k('v_add_f32_dpp %s, %s, %s %s row_mask:0xf bank_mask:0xf' % (v(b), v(b), v(b), m))
    mean, var, mb, r1, b1, v2, m2 = st, st + 4, st + 1, st + 2, st + 3, st + 5, st + 6
    k('v_mul_f32 %s, 0x3acccccd, %s' % (v(mean), v(mean)))
    k('v_mul_f32 %s, 0x3acccccd, %s' % (v(var), v(var)))
    k('v_fma_f32 %s, -%s, %s, %s' % (v(var), v(mean), v(mean), v(var)))
    k('v_max_f32 %s, 0, %s' % (v(var), v(var)))
    rnd_bf16(k, r1, var)
    rnd_bf16(k, mb, mean)
    k('v_add_f32 %s, 0x3727c5ac, %s' % (v(r1), v(r1)))
    rnd_bf16(k, r1, r1)
    k('v_sqrt_f32 %s, %s' % (v(r1), v(r1)))
    rnd_bf16(k, r1, r1)
    k('v_rcp_f32 %s, %s' % (v(r1), v(r1)))
    k('v_sub_f32 %s, %s, %s' % (v(m2), v(mean), v(mb)))
    k('v_mul_f32 %s, %s, %s' % (v(v2), v(var), v(r1)))
    k('v_mul_f32 %s, %s, %s' % (v(m2), v(m2), v(r1)))
    k('v_mul_f32 %s, %s, %s' % (v(v2), v(v2), v(r1)))
    k('v_mul_f32 %s, -1.0, %s' % (v(b1), v(mb)))
    rnd_bf16(k, v2, v2)
    rnd_bf16(k, m2, m2)
    k('v_add_f32 %s, 0x3727c5ac, %s' % (v(v2), v(v2)))
    k('v_mul_f32 %s, %s, %s' % (v(b1), v(b1), v(r1)))
    rnd_bf16(k, v2, v2)
    k('v_sqrt_f32 %s, %s' % (v(v2), v(v2)))
    k('v_sub_f32 %s, %s, %s' % (v(m2), v(b1), v(m2)))
    rnd_bf16(k, v2, v2)
    k('v_rcp_f32 %s, %s' % (v(v2), v(v2)))
    k('s_lshr_b32 s38, s22, 1')
    k('s_lshl_b32 s39, s22, 1')
    k('s_or_b32 s38, s38, s39')
    k('s_and_b32 s38, s38, 3')
    k('s_lshl_b32 s38, s38, 4')
    k('v_mul_f32 %s, %s, %s' % (v(m2), v(m2), v(v2)))
    k('v_mul_f32 %s, %s, %s' % (v(v2), v(v2), v(r1)))
    LN = [0, 32, 16, 48]
    for r in range(4):
        k('v_readlane_b32 %s, %s, %d' % (s(40 + r), v(v2), LN[r]))
        k('v_readlane_b32 %s, %s, %d' % (s(44 + r), v(m2), LN[r]))
    k('v_readlane_b32 s48, %s, s38' % v(r1))
    k('v_readlane_b32 s49, %s, s38' % v(b1))
    def affine(r, T, sa, sb):
        k('v_mov_b32 %s, %s' % (v(T + 15), sb))
        for m in range(5):
            k('v_lshlrev_b32 %s, 16, %s' % (v(T + m), v(X[r] + m)))
            k('v_and_b32 %s, s36, %s' % (v(T + 5 + m), v(X[r] + m)))
        for m in range(10):
            k('v_fma_f32 %s, %s, %s, %s' % (v(T + m), v(T + m), sa, v(T + 15)))
        for m in range(5):
            k('v_cvt_pk_bf16_f32 %s, %s, %s' % (v(T + 10 + m), v(T + m), v(T + 5 + m)))
    for r in range(4):
        T = TT[r % 2]
        affine(r, T, s(40 + r), s(44 + r))
        for m in range(5):
            k('ds_write_b32 %s, %s offset:%d' % (v(wa + r), v(T + 10 + m), m * KBS))
    ra = [za for za in (zo, xo, wa)]
    k('v_xor_b32 %s, %s, %s' % (v(tmp), v(ti), v(tq)))
    k('v_lshlrev_b32 %s, 4, %s' % (v(tmp), v(tmp)))
    k('v_lshl_add_u32 %s, %s, 8, %s' % (v(tmp), v(tq), v(tmp)))
    k('s_mul_i32 s34, s30, %d' % (10 * KBS))
    k('s_add_u32 s34, s34, %d' % AT)
    k('s_lshl_b32 s35, s30, 10')
    k('s_add_u32 s35, s35, s34')
    k('v_add_u32 %s, s35, %s' % (v(ra[0]), v(tmp)))
    k('s_xor_b32 s35, s30, 1')
    k('s_lshl_b32 s35, s35, 10')
    k('s_add_u32 s35, s35, s34')
    k('v_add_u32 %s, s35, %s' % (v(ra[1]), v(tmp)))
    k('s_lshr_b32 s35, s29, 1')
    k('s_lshl_b32 s35, s35, 10')
    k('s_add_u32 s35, s35, s34')
    k('v_add_u32 %s, s35, %s' % (v(ra[2]), v(tmp)))
    k.stamp(6)
    k.barrier()
    k.stamp(7)
    AF = [[ZF + 12 * b + 4 * n for n in range(3)] for b in range(2)]
    acc = [TB + 36 + 4 * n for n in range(5)]
    def areads(ks):
        for n in range(3):
            k('ds_read_b128 %s, %s offset:%d' % (v(AF[ks % 2][n], 4), v(ra[n]), ks * KBS))
    areads(0)
    ho = wa + 1
    k('v_mul_u32_u24 %s, %d, %s' % (v(ho), 5 * S * 64, v(tq)))
    k('v_lshl_add_u32 %s, %s, 2, %s' % (v(ho), v(ti), v(ho)))
    k('s_lshl_b32 s50, s26, 2')
    k('s_add_u32 s50, s50, s22')
    k('s_lshl_b32 s50, s50, 6')
    for m in range(1, 5):
        k('s_add_u32 %s, s50, %d' % (s(50 + m), m * S * 64))
    srd_ws(k, 8, 16, 'H')
    srd_ws(k, 12, 16, 'LN1')
    join = k.newlabel('join')
    sv = k.save()
    for r in range(4):
        k.restore(sv)
        nxt = k.newlabel('sw')
        if r < 3:
            k('s_cmp_lg_u32 s22, %d' % r)
            k('s_cbranch_scc1 %s' % nxt)
        for m in range(5):
            k('buffer_store_dword %s, %s, s[8:11], %s offen' % (v(X[r] + m), v(ho), s(50 + m)))
        affine(r, TT[0], 's48', 's49')
        for m in range(5):
            k('buffer_store_dword %s, %s, s[12:15], %s offen' % (v(TT[0] + 10 + m), v(ho), s(50 + m)))
        if r < 3:
            k('s_branch %s' % join)
            k.label(nxt)
    k.label(join)
    k.stamp(8)
    for ks in range(10):
        if ks < 9:
            areads(ks + 1)
        A = AF[ks % 2]
        for n, (wi, ai) in enumerate(((0, 1), (1, 1), (2, 2), (0, 0), (1, 0))):
            d = acc[(2, 3, 4, 0, 1)[n]]
            k('%s %s, %s, %s, %s' % (MFMA, v(d, 4), Wr[ks][wi], v(A[ai], 4), v(d, 4) if ks else '0'))
    k.stamp(9)
    k('s_mul_i32 s34, s20, 3072')
    k('s_xor_b32 s35, s20, 4')
    k('s_mul_i32 s35, s35, 3072')
    k('v_add_u32 %s, s34, %s' % (v(ra[0]), v(l16)))
    k('v_add_u32 %s, s35, %s' % (v(ra[1]), v(l16)))
    for n in range(3):
        k('ds_write_b128 %s, %s offset:%d' % (v(ra[0]), v(acc[2 + n], 4), ZT + 1024 * n))
    ao, h8, g2 = wa + 1, wa + 2, wa + 3
    k('v_lshlrev_b32 %s, 6, %s' % (v(tmp), v(ti)))
    k('v_lshl_add_u32 %s, %s, 4, %s' % (v(ao), v(tq), v(tmp)))
    k('v_lshl_add_u32 %s, %s, 3, %s' % (v(h8), v(tq), v(tmp)))
    k('v_mov_b32 %s, 0x%x' % (v(g2), f32_bits(G2)))
    k('s_mov_b32 s37, 0x%x' % f32_bits(G1))
    k('s_lshl_b32 s38, s22, 2')
    k('s_lshr_b32 s38, 0x0413, s38')
    k('s_and_b32 s38, s38, 15')
    k('s_lshl_b32 s39, s21, 5')
    k('s_add_u32 s38, s38, s39')
    k('s_mul_i32 s39, s22, %d' % (5 * HHR))
    k('s_add_u32 s38, s38, s39')
    k('s_mul_i32 s40, s29, %d' % HHR)
    k('s_add_u32 s40, s40, s38')
    k('s_lshl_b32 s41, s30, 4')
    k('s_add_u32 s40, s40, s41')
    k('s_lshl_b32 s40, s40, 6')
    k('s_lshr_b32 s41, s29, 1')
    k('s_lshl_b32 s41, s41, 4')
    k('s_add_u32 s41, s41, s38')
    k('s_add_u32 s41, s41, %d' % (4 * HHR))
    k('s_lshl_b32 s41, s41, 6')
    k('s_and_b32 s42, s29, 1')
    k('s_lshl_b32 s42, s42, 5')
    k('s_add_u32 s41, s41, s42')
    k('s_lshl_b32 s42, s30, 30')
    k('s_add_u32 s41, s41, s42')
    srd_ws(k, 4, 16, 'HH')
    k.barrier()
    k.stamp(10)
    R = TT[0]
    for n in range(3):
        k('ds_read_b128 %s, %s offset:%d' % (v(R + 4 * n, 4), v(ra[1]), ZT + 1024 * n))
    xs = [acc[t] + r for t in (0, 1, 4) for r in range(4)]
    for n, x_ in enumerate(xs):
        k('v_add_f32 %s, %s, %s' % (v(x_), v(x_), v(R + n)))
    gelu(k, xs, [TT[1] + n for n in range(12)], 's37', g2)
    for r in range(4):
        k('v_cvt_pk_bf16_f32 %s, %s, %s' % (v(R + r), v(xs[r]), v(xs[4 + r])))
    for r in range(2):
        k('v_cvt_pk_bf16_f32 %s, %s, %s' % (v(R + 4 + r), v(xs[8 + 2 * r]), v(xs[9 + 2 * r])))
    k('buffer_store_dwordx4 %s, %s, s[4:7], s40 offen' % (v(R, 4), v(ao)))
    k('buffer_store_dwordx2 %s, %s, s[4:7], s41 offen' % (v(R + 4, 2), v(h8)))
    fin = k.newlabel('fin')
    k('s_and_b32 s42, s22, 1')
    k('s_mul_i32 s43, s42, 63')
    k('s_lshl_b32 s44, s20, 8')
    k('s_add_u32 s44, s44, s21')
    k('s_cmp_lg_u32 s44, s43')
    k('s_cbranch_scc1 %s' % fin)
    k('s_lshr_b32 s43, s22, 1')
    k('s_add_u32 s44, s43, 1')
    k('s_sub_u32 s43, %d, s43' % (S + 1))
    k('s_cmp_eq_u32 s42, 0')
    k('s_cselect_b32 s43, s44, s43')
    k('s_add_u32 s43, s43, s39')
    k('s_lshl_b32 s43, s43, 6')
    k('v_lshrrev_b32 %s, 3, v0' % v(tmp))
    k('v_mul_u32_u24 %s, %d, %s' % (v(tmp), HHR * 64, v(tmp)))
    k('v_and_b32 %s, 7, v0' % v(ao))
    k('v_lshl_add_u32 %s, %s, 4, %s' % (v(tmp), v(ao), v(tmp)))
    k('v_mov_b32 %s, 0x40000000' % v(ao))
    k('v_cmp_gt_u32 vcc, 40, v0')
    k('v_cndmask_b32 %s, %s, %s, vcc' % (v(tmp), v(ao), v(tmp)))
    for n in range(4):
        k('v_mov_b32 %s, 0' % v(TT[1] + n))
    k('buffer_store_dwordx4 %s, %s, s[4:7], s43 offen' % (v(TT[1], 4), v(tmp)))
    k.label(fin)
    k.end()
```

```python
import re, copy

TRANS = ('v_exp_f32', 'v_log_f32', 'v_rcp_f32', 'v_rsq_f32', 'v_sqrt_f32', 'v_sin_f32', 'v_cos_f32',
         'v_rcp_iflag_f32', 'v_exp_f16', 'v_log_f16', 'v_rcp_f16', 'v_rsq_f16', 'v_sqrt_f16')
DPPW = ('quad_perm', 'row_shr', 'row_shl', 'row_ror', 'row_bcast', 'row_mirror', 'row_half_mirror',
        'wave_shl', 'wave_shr', 'wave_rol', 'wave_ror', 'row_newbcast')
REG = re.compile(r'^(-|\|)?\|?([vas])(\d+|\[(\d+):(\d+)\])\|?$')


def regs_of(tok):
    tok = tok.strip()
    if tok.startswith('-'):
        tok = tok[1:]
    tok = tok.strip('|')
    if tok.startswith('abs(') or tok.startswith('neg('):
        tok = tok[4:-1]
    if tok == 'vcc':
        return {('s', 106), ('s', 107)}
    if tok == 'vcc_lo':
        return {('s', 106)}
    if tok == 'vcc_hi':
        return {('s', 107)}
    if tok == 'exec':
        return {('s', 126), ('s', 127)}
    if tok == 'exec_lo':
        return {('s', 126)}
    if tok == 'exec_hi':
        return {('s', 127)}
    if tok == 'm0':
        return {('s', 124)}
    m = re.match(r'^([vas])(\d+)$', tok)
    if m:
        return {(m.group(1), int(m.group(2)))}
    m = re.match(r'^([vas])\[(\d+):(\d+)\]$', tok)
    if m:
        return {(m.group(1), i) for i in range(int(m.group(2)), int(m.group(3)) + 1)}
    return set()


def split_ops(s):
    ops, cur, depth = [], '', 0
    for ch in s:
        if ch in '[(':
            depth += 1
        if ch in '])':
            depth -= 1
        if ch == ',' and depth == 0:
            ops.append(cur.strip())
            cur = ''
        else:
            cur += ch
    if cur.strip():
        ops.append(cur.strip())
    mods = ''
    if ops:
        last = ops[-1]
        depth = 0
        for i, ch in enumerate(last):
            if ch in '[(':
                depth += 1
            if ch in '])':
                depth -= 1
            if ch == ' ' and depth == 0:
                ops[-1], mods = last[:i], last[i + 1:]
                break
    return ops, mods


class Ins:
    __slots__ = ('text', 'mn', 'ops', 'mods', 'cls', 'w', 'r', 'slots', 'passes', 'A', 'B', 'C', 'dpp', 'trans',
                 'wide_store', 'lds_dma', 'sdwa_dst', 'target')

    def __init__(self, text):
        self.text = text
        t = text.split(';')[0].strip()
        parts = t.split(None, 1)
        mn = parts[0]
        self.mn = mn
        ops, mods = split_ops(parts[1]) if len(parts) > 1 else ([], '')
        self.ops, self.mods = ops, mods
        self.w, self.r = set(), set()
        self.slots = 1
        self.passes = 0
        self.A = self.B = self.C = set()
        self.dpp = self.trans = self.wide_store = self.lds_dma = self.sdwa_dst = False
        self.target = None
        R = [regs_of(o) for o in ops]
        allr = set().union(*R) if R else set()
        base = re.sub(r'_(e32|e64|dpp|sdwa)$', '', mn)
        if mn.startswith('v_mfma'):
            self.cls = 'mfma'
            self.w = R[0]
            self.A, self.B, self.C = R[1], R[2], R[3]
            self.r = R[1] | R[2] | R[3]
            self.passes = 8 if '32x32' in mn else 4
        elif mn.startswith('v_'):
            self.cls = 'valu'
            if base == 'v_nop':
                pass
            elif base.startswith('v_cmpx'):
                raise ValueError('no cmpx')
            elif 'swap' in base:
                self.w = allr
                self.r = allr
            elif base in ('v_add_co_u32', 'v_sub_co_u32', 'v_subrev_co_u32', 'v_addc_co_u32', 'v_subb_co_u32',
                          'v_mad_u64_u32', 'v_div_scale_f32'):
                self.w = R[0] | R[1]
                self.r = set().union(*R[2:])
            else:
                self.w = R[0]
                self.r = set().union(*R[1:]) if len(R) > 1 else set()
                if base.startswith(('v_fmac', 'v_mac', 'v_pk_fmac', 'v_dot2c', 'v_writelane')):
                    self.r |= R[0]
                if base == 'v_cndmask_b32' and len(ops) == 3:
                    self.r |= regs_of('vcc')
            self.dpp = any(d in mods for d in DPPW)
            if self.dpp:
                self.r |= self.w
            self.trans = base in TRANS
            self.sdwa_dst = ('dst_sel' in mods and 'dst_sel:DWORD' not in mods)
        elif mn.startswith(('buffer_', 'global_')):
            self.cls = 'vmem'
            ml = mods.split()
            if 'load' in mn:
                if 'lds' in ml or '_lds_' in mn:
                    self.lds_dma = True
                    self.r = allr | regs_of('m0')
                else:
                    self.w = R[0]
                    self.r = set().union(*R[1:])
            elif 'atomic' in mn:
                if 'sc0' in ml:
                    self.w = R[0]
                self.r = allr
            else:
                self.r = allr
                self.wide_store = ('x3' in mn or 'x4' in mn)
                if self.wide_store:
                    self.A = R[0] if mn.startswith('buffer_') else R[1]
        elif mn.startswith('ds_'):
            self.cls = 'ds'
            if mn.startswith(('ds_read', 'ds_bpermute', 'ds_permute', 'ds_swizzle')) or '_rtn' in mn:
                self.w = R[0]
                self.r = set().union(*R[1:])
            else:
                self.r = allr
        elif mn.startswith(('s_load', 's_buffer_load', 's_memtime', 's_memrealtime')):
            self.cls = 'smem'
            self.w = R[0]
            self.r = set().union(*R[1:]) if len(R) > 1 else set()
        elif mn.startswith('s_'):
            self.cls = 'salu'
            if mn == 's_nop':
                self.slots = int(ops[0], 0) + 1
            elif mn.startswith(('s_cbranch', 's_branch')):
                self.target = ops[0]
            elif mn.startswith(('s_cmp', 's_waitcnt', 's_barrier', 's_endpgm', 's_setprio', 's_sleep', 's_bitcmp')):
                self.r = allr
            else:
                self.w = R[0]
                self.r = set().union(*R[1:]) if len(R) > 1 else set()
                if 'saveexec' in mn:
                    self.w |= regs_of('exec')
        else:
            raise ValueError('unknown instr ' + text)


def vg(s):
    return {x for x in s if x[0] in 'va'}


def sg(s):
    return {x for x in s if x[0] == 's'}


def need_states(p, c):
    n = 0
    if p.cls == 'valu':
        pw, ps = vg(p.w), sg(p.w)
        if p.mn.startswith('v_dot') and pw & (c.r | c.w):
            same_c = (c.mn == p.mn and not (pw & (regs_of(c.ops[1]) | regs_of(c.ops[2]))))
            if not same_c:
                n = max(n, 3)
        if c.cls == 'mfma' and pw & c.r:
            n = max(n, 2)
        if c.cls == 'valu':
            if c.dpp and pw & c.r:
                n = max(n, 2)
            if 'permlane' in c.mn and pw & c.r:
                n = max(n, 2)
            if c.mn.startswith(('v_readlane', 'v_readfirstlane')) and pw & c.r:
                n = max(n, 1)
            if p.trans and pw & (c.r | c.w):
                n = max(n, 1)
            if p.sdwa_dst and pw & (c.r | c.w):
                n = max(n, 1)
            if ps & c.r:
                n = max(n, 4 if c.mn.startswith(('v_readlane', 'v_writelane', 'v_div_fmas')) else 2)
        if c.cls == 'vmem' and ps & c.r:
            n = max(n, 5)
        if c.cls in ('salu', 'smem') and ps & c.r:
            n = max(n, 1)
    elif p.cls == 'mfma':
        big = 8 if p.passes == 4 else 12
        if c.cls == 'mfma':
            if p.w & (c.A | c.B):
                n = max(n, big)
            if p.w & c.C:
                if not (p.w == c.C and p.passes == c.passes):
                    n = max(n, 6 if p.passes == 4 else 10)
            elif p.w & c.w:
                n = max(n, big)
        elif c.cls in ('valu', 'vmem', 'ds'):
            if p.w & (c.r | c.w):
                n = max(n, big)
            if c.cls == 'valu' and p.C & c.w:
                n = max(n, 3 if p.passes == 4 else 7)
            if c.cls in ('vmem', 'ds') and p.C & c.w:
                n = max(n, 3 if p.passes == 4 else 7)
    elif p.cls == 'vmem':
        if p.wide_store and p.A & c.w:
            n = max(n, 2)
    elif p.cls == 'salu':
        if ('s', 124) in p.w and c.cls == 'vmem' and c.lds_dma:
            n = max(n, 1)
        if ({('s', 126), ('s', 127)} & p.w) and c.cls == 'valu' and c.dpp:
            n = max(n, 1)
    if p.cls == 'ds' and p.mn.startswith('ds_write') and ('b128' in p.mn or 'b96' in p.mn):
        if c.cls == 'valu' and (p.r & c.w):
            n = max(n, 1)
    return n


class Kern:
    def __init__(self, name):
        self.name = name
        self.out = []
        self.vmq = []
        self.lgq = []
        self.nid = 0
        self.hist = []
        self.lbl = 0
        self.maxv = -1
        self.maxa = -1
        self.maxs = -1
        self.nops = 0
        self.prof = None
        self.nst = 0

    def stamp(self, n):
        if self.prof is not None:
            self.op('s_memrealtime s[%d:%d]' % (64 + 2 * n, 65 + 2 * n))
            self.nst = max(self.nst, n + 1)

    def _raw(self, ins):
        need = 0
        dist = 0
        for p in reversed(self.hist):
            if dist >= 20:
                break
            need = max(need, need_states(p, ins) - dist)
            dist += p.slots
        while need > 0:
            n = min(need, 16)
            nop = Ins('s_nop %d' % (n - 1))
            self.out.append(nop)
            self.hist.append(nop)
            self.nops += n
            need -= n
        self.out.append(ins)
        self.hist.append(ins)
        if len(self.hist) > 40:
            self.hist = self.hist[-24:]
        for (t, i) in ins.w | ins.r:
            if t == 'v':
                self.maxv = max(self.maxv, i)
            elif t == 'a':
                self.maxa = max(self.maxa, i)
            elif i < 102:
                self.maxs = max(self.maxs, i)

    def _wait(self, vm=None, lg=None):
        parts = []
        if vm is not None:
            vm = min(vm, 63)
            parts.append('vmcnt(%d)' % vm)
            self.vmq = self.vmq[len(self.vmq) - vm:] if vm else []
        if lg is not None:
            lg = min(lg, 15)
            parts.append('lgkmcnt(%d)' % lg)
            self.lgq = self.lgq[len(self.lgq) - lg:] if lg else []
        if parts:
            self._raw(Ins('s_waitcnt ' + ' '.join(parts)))

    def __call__(self, text):
        for line in text.strip().split('\n'):
            line = line.strip()
            if not line or line.startswith(';'):
                continue
            self.op(line)

    def op(self, text):
        ins = Ins(text)
        touch = ins.r | ins.w
        vm = lg = None
        for idx in range(len(self.vmq) - 1, -1, -1):
            w = self.vmq[idx][1]
            hit = w & (ins.r if ins.cls == 'vmem' else touch)
            if hit:
                vm = len(self.vmq) - 1 - idx
                break
        anysm = any(e[2] for e in self.lgq)
        for idx in range(len(self.lgq) - 1, -1, -1):
            w = self.lgq[idx][1]
            hit = w & (ins.r if (ins.cls == 'ds' and not self.lgq[idx][2]) else touch)
            if hit:
                lg = 0 if anysm else len(self.lgq) - 1 - idx
                break
        self._wait(vm, lg)
        self._raw(ins)
        self.nid += 1
        if ins.cls == 'vmem':
            self.vmq.append((self.nid, set(ins.w)))
        elif ins.cls == 'ds':
            self.lgq.append((self.nid, set(ins.w), False))
        elif ins.cls == 'smem':
            self.lgq.append((self.nid, set(ins.w), True))
        return self.nid

    def wait_vm(self, token=None):
        if token is None:
            if self.vmq:
                self._wait(vm=0)
            return
        for idx, e in enumerate(self.vmq):
            if e[0] == token:
                self._wait(vm=len(self.vmq) - 1 - idx)
                return

    def wait_lg(self):
        if self.lgq:
            self._wait(lg=0)

    def barrier(self, vm=False):
        if vm is True:
            self.wait_vm()
        elif vm:
            self.wait_vm(vm)
        self.wait_lg()
        self._raw(Ins('s_barrier'))

    def label(self, name):
        self.out.append(name + ':')

    def newlabel(self, hint='L'):
        self.lbl += 1
        return '.L%s_%s%d' % (self.name, hint, self.lbl)

    def comment(self, s):
        self.out.append('; ' + s)

    def save(self):
        return (list(self.vmq), list(self.lgq), list(self.hist))

    def restore(self, st):
        self.vmq, self.lgq, self.hist = list(st[0]), list(st[1]), list(st[2])

    def end(self):
        if self.prof is not None and self.nst:
            kidx, off = self.prof
            self.stamp(14)
            self._raw(Ins('s_waitcnt vmcnt(0) lgkmcnt(0)'))
            self.vmq, self.lgq = [], []
            self.stamp(15)
            self('v_lshrrev_b32 v1, 6, v0')
            self('v_and_b32 v2, 63, v0')
            self('v_readfirstlane_b32 s100, v1')
            self('s_add_u32 s96, s16, 0x%x' % off)
            self('s_addc_u32 s97, s17, 0')
            self('s_mov_b32 s98, 0x%x' % (8 * 1024 * 16 * 64))
            self('s_mov_b32 s99, 0x00020000')
            self('s_add_u32 s101, s2, %d' % (kidx * 1024))
            self('s_lshl_b32 s101, s101, 4')
            self('s_add_u32 s101, s101, s100')
            self('s_lshl_b32 s101, s101, 6')
            self('v_mov_b32 v1, 0')
            for n in range(16):
                self('v_writelane_b32 v1, s%d, %d' % (64 + 2 * n, n))
            self('v_lshlrev_b32 v3, 2, v2')
            self('v_cmp_gt_u32 vcc, 16, v2')
            self('v_mov_b32 v2, 0x40000000')
            self('v_cndmask_b32 v3, v2, v3, vcc')
            self('buffer_store_dword v1, v3, s[96:99], s101 offen')
            self.nst = 0
        self._raw(Ins('s_endpgm'))
        self.vmq, self.lgq, self.hist = [], [], []

    def check_branches(self):
        lab = {o[:-1]: i for i, o in enumerate(self.out) if isinstance(o, str) and o.endswith(':')}
        for i, o in enumerate(self.out):
            if isinstance(o, Ins) and o.target in lab:
                hist = [x for x in self.out[max(0, i - 30):i + 1] if isinstance(x, Ins)]
                j = lab[o.target]
                cnt = 0
                while j < len(self.out) and cnt < 22:
                    c = self.out[j]
                    j += 1
                    if not isinstance(c, Ins):
                        continue
                    dist = 0
                    for p in reversed(hist):
                        if need_states(p, c) > dist:
                            raise RuntimeError('hazard across branch %s: %s -> %s' % (o.text, p.text, c.text))
                        dist += p.slots
                    hist.append(c)
                    cnt += c.slots
                    if c.mn in ('s_branch', 's_endpgm'):
                        break

    def text(self):
        self.check_branches()
        L = []
        for o in self.out:
            L.append(o if isinstance(o, str) else '  ' + o.text)
        return '\n'.join(L)

    def ninstr(self):
        return sum(1 for o in self.out if isinstance(o, Ins))


def v(i, n=1):
    return 'v%d' % i if n == 1 else 'v[%d:%d]' % (i, i + n - 1)


def a(i, n=1):
    return 'a%d' % i if n == 1 else 'a[%d:%d]' % (i, i + n - 1)


def s(i, n=1):
    return 's%d' % i if n == 1 else 's[%d:%d]' % (i, i + n - 1)


class Alloc:
    def __init__(self, start=0, limit=256):
        self.n = start
        self.limit = limit

    def __call__(self, n=1, align=1):
        if n > 1:
            align = max(align, 2)
        self.n = (self.n + align - 1) // align * align
        r = self.n
        self.n += n
        assert self.n <= self.limit, 'out of registers'
        return r
```

```python
from common import *
from k1 import rnd_bf16
import os

G1 = -2 * np.log2(np.e) * np.sqrt(2 / np.pi)
G2 = G1 * 0.044715

def qsum(k, x, t):
    k('v_mov_b32 %s, %s' % (v(t), v(x)))
    k('v_permlane32_swap_b32 %s, %s' % (v(x), v(t)))
    k('v_add_f32 %s, %s, %s' % (v(x), v(x), v(t)))
    k('v_mov_b32 %s, %s' % (v(t), v(x)))
    k('v_permlane16_swap_b32 %s, %s' % (v(x), v(t)))
    k('v_add_f32 %s, %s, %s' % (v(x), v(x), v(t)))

def weave(k, main, fill):
    n, m = len(main), len(fill)
    j = 0
    for i, op in enumerate(main):
        k(op)
        while j < m and (j + 1) * n <= (i + 1) * m + (n - 1) - (n - 1) * 0 and j * n <= i * m:
            f = fill[j]
            f() if callable(f) else k(f)
            j += 1
    while j < m:
        f = fill[j]
        f() if callable(f) else k(f)
        j += 1

def tile_ids(k, rbits):
    k('s_bfe_u32 s21, s2, 0x20001')
    k('s_lshl_b32 s21, s21, %d' % rbits)
    k('s_bfe_u32 s23, s2, 0x%x' % ((rbits << 16) | 3))
    k('s_add_u32 s21, s21, s23')
    k('s_and_b32 s22, s2, 1')
    k('s_lshl_b32 s22, s22, %d' % (5 - rbits))
    k('s_lshr_b32 s23, s2, %d' % (3 + rbits))
    k('s_add_u32 s22, s22, s23')

def col_geom(k, NT):
    NP = NT // 2
    k('s_lshr_b32 s27, s22, 1')
    k('s_mul_i32 s27, s27, %d' % NT)
    k('s_add_u32 s28, s27, %d' % NP)
    k('s_and_b32 s29, s22, 1')
    k('s_mul_i32 s30, s29, %d' % (NP + 1))
    k('s_add_u32 s27, s27, s30')
    k('s_lshl_b32 s29, s29, 5')

def half_addr(k, d, ti, tq, tmp):
    k('v_lshrrev_b32 %s, 1, %s' % (v(tmp), v(tq)))
    k('v_lshlrev_b32 %s, 4, %s' % (v(d), v(ti)))
    k('v_lshl_add_u32 %s, %s, 8, %s' % (v(d), v(tmp), v(d)))
    k('v_and_b32 %s, 1, %s' % (v(tmp), v(tq)))
    k('v_lshl_add_u32 %s, %s, 3, %s' % (v(d), v(tmp), v(d)))

A_RING = {'k5': 104, 'k7': int(os.environ.get('RING7', 160))}
def gemm_lds(kind):
    return 160 * 1024 if kind == 'k6' else A_RING[kind] * 1024

def emit_gemmA(kind):
    NK, NKp, AREG, AROWS, AOFF, WREG = {
        'k5': (20, 20, 'HH', HHR, 2, 'W2F'),
        'k7': (54, 56, 'G', S, 0, 'W4F'),
    }[kind]
    NT = 5
    RING = A_RING[kind]
    NS = NK // 2
    NR = (NK * NT + 7) // 8
    PD = int(os.environ.get('PD' + kind[1], 4))
    BS = 2
    def fn(k, wg0):
        va = Alloc(1)
        k.stamp(0)
        k('s_load_dwordx2 s[16:17], s[0:1], %d' % KA['ws'])
        if kind == 'k7':
            k('s_load_dwordx2 s[40:41], s[0:1], %d' % KA['out'])
        ti, tq, l16, ao, tmp = [va() for _ in range(5)]
        k('v_lshrrev_b32 %s, 6, v0' % v(ti))
        k('v_and_b32 %s, 63, v0' % v(l16))
        k('v_readfirstlane_b32 s20, %s' % v(ti))
        k('v_and_b32 %s, 15, v0' % v(ti))
        k('v_lshrrev_b32 %s, 4, %s' % (v(tq), v(l16)))
        k('v_lshlrev_b32 %s, 4, %s' % (v(l16), v(l16)))
        k('v_lshlrev_b32 %s, 4, %s' % (v(ao), v(tq)))
        k('v_lshl_add_u32 %s, %s, 6, %s' % (v(ao), v(ti), v(ao)))
        tile_ids(k, 3)
        k('s_and_b32 s18, s20, 3')
        k('s_lshr_b32 s19, s20, 2')
        k('s_lshl_b32 s23, s21, 2')
        k('s_add_u32 s23, s23, s18')
        k('s_lshl_b32 s23, s23, 10')
        k('s_mul_i32 s24, s19, %d' % (AROWS * 64))
        k('s_add_u32 s24, s24, s23')
        if AOFF:
            k('s_add_u32 s24, s24, %d' % (AOFF * 64))
        k('s_mul_i32 s25, s22, %d' % (NKp * NT))
        k('s_add_u32 s25, s25, s20')
        k('s_lshl_b32 s25, s25, 10')
        k('s_lshl_b32 s26, s20, 10')
        srd_ws(k, 4, 16, WREG)
        srd_ws(k, 8, 16, AREG)
        rtok = {}
        def dma(r):
            def f():
                k('s_add_u32 m0, s26, %d' % ((8 * r % RING) * 1024))
                rtok[r] = k.op('buffer_load_dwordx4 %s, s[4:7], s25 offen lds' % v(l16))
                if r + 1 < NR:
                    k('s_add_u32 s25, s25, 8192')
            return f
        def act(j):
            def f():
                k('buffer_load_dwordx4 %s, %s, s[8:11], s24 offen' % (a(4 * j, 4), v(l16 if kind == 'k7' else ao)))
                if j + 1 < NS:
                    k('s_add_u32 s24, s24, %d' % (2 * AROWS * 64))
            return f
        loads = []
        r = 0
        for j in range(NS):
            while r < NR and 8 * r < 10 * (j + 1):
                loads.append((j, dma(r), r))
                r += 1
            loads.append((j, act(j), None))
        lp = [0]
        def take(upto, freed):
            out = []
            while lp[0] < len(loads):
                j, f, r = loads[lp[0]]
                if j > upto or (r is not None and 8 * r + 8 - RING > freed):
                    break
                out.append(f)
                lp[0] += 1
            return out
        for f in take(1, 0):
            f()
        k.stamp(1)
        col_geom(k, NT)
        ho = va()
        k('v_lshlrev_b32 %s, 3, %s' % (v(ho), v(tq)))
        k('v_lshl_add_u32 %s, %s, 6, %s' % (v(ho), v(ti), v(ho)))
        hn = va()
        half_addr(k, hn, ti, tq, tmp)
        k('s_add_u32 s27, s27, s19')
        k('s_lshl_b32 s32, s27, 17')
        k('s_add_u32 s32, s32, s23')
        k('s_lshl_b32 s35, s28, 17')
        k('s_add_u32 s35, s35, s23')
        k('s_add_u32 s35, s35, s29')
        k('s_lshl_b32 s33, s19, 30')
        k('s_add_u32 s35, s35, s33')
        k('s_mul_i32 s34, s29, 15')
        k('s_add_u32 s34, s34, s35')
        k('s_mov_b32 s36, 0xffff0000')
        acc = [va(4, 4) for t in range(NT)]
        WB = [[va(4, 4) for t in range(NT)] for b in range(2)]
        def ld_tile(R, srd, new=False):
            k('buffer_load_dwordx4 %s, %s, %s, s32 offen' % (v(R, 4), v(l16 if new else ao), s(srd, 4)))
            k('buffer_load_dwordx2 %s, %s, %s, %s offen' % (v(R + 4, 2), v(hn if new else ho), s(srd, 4), 's34' if new else 's35'))
        R1, R2 = va(6, 4), va(6, 4)
        if kind == 'k5':
            srd_ws(k, 12, 16, 'LN1')
            ld_tile(R1, 12)
        else:
            srd_ws(k, 12, 16, 'H')
            ld_tile(R1, 12)
            srd_ws(k, 44, 16, 'X1')
            ld_tile(R2, 44, True)
        for f in take(PD - 1, 0):
            f()
        k.stamp(2)
        NW = (min(RING, NK * NT) + 59) // 60
        lb = [[va() for n in range(3)] for w in range(NW)]
        k('s_mul_i32 s37, s19, 7168')
        k('s_mul_i32 s38, s19, 3072')
        k('s_add_u32 s38, s38, 2048')
        k('s_mul_i32 s39, s19, 5120')
        k('s_add_u32 s39, s39, 4096')
        for n in range(3):
            k('v_add_u32 %s, %s, %s' % (v(lb[0][n]), s(37 + n), v(l16)))
            for w in range(1, NW):
                k('v_add_u32 %s, 0x%x, %s' % (v(lb[w][n]), w * 60 * 1024, v(lb[0][n])))
        def reads(j):
            f0 = (10 * j) % RING
            w, off = f0 // 60, (f0 % 60) * 1024
            return ['ds_read_b128 %s, %s offset:%d' % (v(WB[j % 2][t], 4), v(lb[w][t // 2]), off + (t % 2) * 1024) for t in (2, 3, 4, 0, 1)]
        def mfmas(j):
            return ['%s %s, %s, %s, %s' % (MFMA, v(acc[t], 4), v(WB[j % 2][t], 4), a(4 * j, 4), v(acc[t], 4) if j else '0') for t in (2, 3, 4, 0, 1)]
        freed = 0
        for j in range(NS + 1):
            fill = []
            if j < NS:
                if j % BS == 0:
                    lastr = min(NR, (10 * (j + BS) + 7) // 8) - 1
                    k.barrier(vm=rtok[lastr], lg=False)
                    if j // BS < 8: k.stamp(3 + j // BS)
                    freed = max(0, 10 * (j - 1))
                fill = reads(j)
                ld = take(j + PD, freed)
                f2 = []
                for n, x in enumerate(fill):
                    f2.append(x)
                    if n in (1, 3, 4) and ld:
                        f2.append(ld.pop(0))
                fill = f2 + ld
            if j:
                weave(k, mfmas(j - 1), fill)
            else:
                for x in fill:
                    x() if callable(x) else k(x)
        assert lp[0] == len(loads)
        k.stamp(12)
        xo = (10 * (NS - 2 * BS) % RING) * 1024
        k('s_mul_i32 s37, s20, 3072')
        k('s_xor_b32 s38, s20, 4')
        k('s_mul_i32 s38, s38, 3072')
        jl = (NS - 1) // BS * BS
        base = (10 * (jl - 4)) % RING
        assert base + 24 <= RING and jl - 4 >= 0
        k('s_add_u32 s37, s37, %d' % (base * 1024))
        k('s_add_u32 s38, s38, %d' % (base * 1024))
        k('v_add_u32 %s, s37, %s' % (v(lb[0][0]), v(l16)))
        k('v_add_u32 %s, s38, %s' % (v(lb[0][1]), v(l16)))
        for n in range(3):
            k('ds_write_b128 %s, %s offset:%d' % (v(lb[0][0]), v(acc[2 + n], 4), 1024 * n))
        def elems():
            for r in range(4):
                for h in range(2):
                    yield acc[h] + r, r, h
            for r in range(4):
                yield acc[4] + r, 4 + r // 2, r % 2
        T = WB[NS % 2][0]
        for n, (ar, d, h) in enumerate(elems()):
            k(('v_and_b32 %s, s36, %s' if h else 'v_lshlrev_b32 %s, 16, %s') % (v(T + n), v(R1 + d)))
            if kind == 'k7':
                k(('v_and_b32 %s, s36, %s' if h else 'v_lshlrev_b32 %s, 16, %s') % (v(tmp), v(R2 + d)))
                k('v_add_f32 %s, %s, %s' % (v(T + n), v(T + n), v(tmp)))
        for n, (ar, d, h) in enumerate(elems()):
            k('v_add_f32 %s, %s, %s' % (v(ar), v(ar), v(T + n)))
        if kind == 'k5':
            srd_ws(k, 12, 16, 'X1')
            ao, ho = l16, hn
            k('s_mov_b32 s35, s34')
            srd_ws(k, 8, 16, 'ST1')
            k('s_lshl_b32 s37, s22, 1')
            k('s_add_u32 s37, s37, s19')
            k('s_lshl_b32 s37, s37, 3')
            k('s_lshl_b32 s38, s23, 1')
            k('s_add_u32 s37, s37, s38')
            k('s_mov_b32 s38, 0x3f803f80')
            k('s_sub_u32 s39, s19, 1')
            k('v_lshlrev_b32 %s, 28, %s' % (v(tq), v(tq)))
            k('v_lshl_add_u32 %s, %s, 7, %s' % (v(tq), v(ti), v(tq)))
        else:
            srd_from(k, 12, 40, 0, S * D * 2)
            k('v_mul_u32_u24 %s, 1280, %s' % (v(tmp), v(ti)))
            k('v_lshl_add_u32 %s, %s, 4, %s' % (v(ao), v(tq), v(tmp)))
            k('v_lshl_add_u32 %s, %s, 3, %s' % (v(ho), v(tq), v(tmp)))
            k('s_mul_i32 s37, s23, 20')
            k('s_lshl_b32 s32, s27, 6')
            k('s_add_u32 s32, s32, s37')
            k('s_lshl_b32 s35, s28, 6')
            k('s_add_u32 s35, s35, s37')
            k('s_add_u32 s35, s35, s29')
            k('s_add_u32 s35, s35, s33')
        k.barrier()
        k.stamp(13)
        X = WB[(NS + 1) % 2][0]
        for n in range(3):
            k('ds_read_b128 %s, %s offset:%d' % (v(X + 4 * n, 4), v(lb[0][1]), 1024 * n))
        for n, t in enumerate((0, 1, 4)):
            for r in range(4):
                k('v_add_f32 %s, %s, %s' % (v(acc[t] + r), v(acc[t] + r), v(X + 4 * n + r)))
            if n == 1:
                for r in range(4):
                    k('v_cvt_pk_bf16_f32 %s, %s, %s' % (v(R1 + r), v(acc[0] + r), v(acc[1] + r)))
                k('buffer_store_dwordx4 %s, %s, s[12:15], s32 offen' % (v(R1, 4), v(ao)))
        for r in range(2):
            k('v_cvt_pk_bf16_f32 %s, %s, %s' % (v(R1 + 4 + r), v(acc[4] + 2 * r), v(acc[4] + 2 * r + 1)))
        k('buffer_store_dwordx2 %s, %s, s[12:15], s35 offen' % (v(R1 + 4, 2), v(ho)))
        if kind == 'k5':
            sm = R2
            for r in range(2):
                k('v_and_b32 %s, s39, %s' % (v(R2 + 4 + r), v(R1 + 4 + r)))
            src = [R1, R1 + 1, R1 + 2, R1 + 3, R2 + 4, R2 + 5]
            for d, x in enumerate(src):
                k('v_dot2_f32_bf16 %s, %s, s38, %s' % (v(sm), v(x), v(sm) if d else '0'))
                k('v_dot2_f32_bf16 %s, %s, %s, %s' % (v(sm + 1), v(x), v(x), v(sm + 1) if d else '0'))
            qsum(k, sm, R2 + 2)
            qsum(k, sm + 1, R2 + 3)
            k('buffer_store_dwordx2 %s, %s, s[8:11], s37 offen' % (v(sm, 2), v(tq)))
        k.end()
    return fn


def emit_gemmB(k, wg0):
    NK, NT = 20, 7
    RK = 10
    PD = int(os.environ.get('PD6', 5))
    BS = 2
    va = Alloc(1)
    k.stamp(0)
    k('s_load_dwordx2 s[16:17], s[0:1], %d' % KA['ws'])
    ti, tq, l16, ao, tmp = [va() for _ in range(5)]
    k('v_lshrrev_b32 %s, 6, v0' % v(ti))
    k('v_and_b32 %s, 63, v0' % v(l16))
    k('v_readfirstlane_b32 s20, %s' % v(ti))
    k('v_and_b32 %s, 15, v0' % v(ti))
    k('v_lshrrev_b32 %s, 4, %s' % (v(tq), v(l16)))
    k('v_lshlrev_b32 %s, 4, %s' % (v(l16), v(l16)))
    k('v_lshlrev_b32 %s, 4, %s' % (v(ao), v(tq)))
    k('v_lshl_add_u32 %s, %s, 6, %s' % (v(ao), v(ti), v(ao)))
    tile_ids(k, 2)
    k('s_lshl_b32 s26, s20, 10')
    k('s_lshl_b32 s24, s21, 13')
    k('s_add_u32 s24, s24, s26')
    k('s_mul_i32 s25, s22, %d' % (NK * NT * 1024))
    k('s_add_u32 s25, s25, s26')
    k('s_cmp_eq_u32 s20, 7')
    k('s_cselect_b32 s25, 0x40000000, s25')
    srd_ws(k, 4, 16, 'W3F')
    srd_ws(k, 8, 16, 'X1')
    tok = {}
    def dma(ks, wh):
        def f():
            k('s_add_u32 m0, s26, %d' % ((ks % RK) * 16384 + wh * 8192))
            if wh:
                tok[ks] = k.op('buffer_load_dwordx4 %s, s[4:7], s25 offen lds' % v(l16))
                k('s_add_u32 s25, s25, %d' % (NT * 1024))
            else:
                k('buffer_load_dwordx4 %s, s[8:11], s24 offen lds' % v(l16))
                k('s_add_u32 s24, s24, %d' % (S * 64))
        return f
    for ks in range(2):
        dma(ks, 0)(); dma(ks, 1)()
    k.stamp(1)
    k('s_and_b32 s18, s20, 3')
    k('s_lshl_b32 s23, s21, 2')
    k('s_add_u32 s23, s23, s18')
    k('s_lshl_b32 s23, s23, 11')
    col_geom(k, NT)
    ho, so = va(), va()
    half_addr(k, ho, ti, tq, tmp)
    k('v_lshlrev_b32 %s, 1, %s' % (v(so), v(ao)))
    k('v_lshlrev_b32 %s, 4, %s' % (v(tmp), v(tq)))
    ST = va(16, 4)
    acc = [[va(4, 4) for t in range(4)] for m in range(2)]
    CS = va(16, 4)
    for ks in range(2, 4):
        dma(ks, 0)(); dma(ks, 1)()
    srd_ws(k, 12, 16, 'ST1')
    k('s_lshl_b32 s37, s23, 1')
    for m in range(2):
        for h in range(2):
            k('buffer_load_dwordx4 %s, %s, s[12:15], s37 offen offset:%d' % (v(ST + 8 * m + 4 * h, 4), v(so), m * 2048 + h * 16))
    srd_ws(k, 44, 16, 'CS3')
    k('s_mul_i32 s37, s22, %d' % (NT * 64))
    k('s_lshr_b32 s19, s20, 2')
    k('s_lshl_b32 s38, s19, 8')
    k('s_add_u32 s37, s37, s38')
    for t in range(4):
        k('buffer_load_dwordx4 %s, %s, s[44:47], s37 offen offset:%d' % (v(CS + 4 * t, 4), v(tmp), t * 64))
    for ks in range(4, PD):
        dma(ks, 0)(); dma(ks, 1)()
    k.stamp(2)
    k('s_lshl_b32 s38, s19, 1')
    k('s_add_u32 s27, s27, s38')
    k('s_lshl_b32 s32, s27, 17')
    k('s_add_u32 s32, s32, s23')
    k('s_add_u32 s33, s32, %d' % (1 << 17))
    k('s_lshl_b32 s35, s28, 17')
    k('s_add_u32 s35, s35, s23')
    k('s_lshl_b32 s29, s29, 4')
    k('s_add_u32 s35, s35, s29')
    srd_ws(k, 12, 16, 'G')
    la = [va() for w in range(3)]
    lw = [va() for w in range(3)]
    k('s_lshl_b32 s37, s18, 11')
    k('s_lshl_b32 s38, s19, 12')
    k('s_add_u32 s38, s38, 8192')
    k('v_add_u32 %s, s37, %s' % (v(la[0]), v(l16)))
    k('v_add_u32 %s, s38, %s' % (v(lw[0]), v(l16)))
    for w in (1, 2):
        k('v_add_u32 %s, 0x%x, %s' % (v(la[w]), w << 16, v(la[0])))
        k('v_add_u32 %s, 0x%x, %s' % (v(lw[w]), w << 16, v(lw[0])))
    C1, C2, SD = va(2), va(2), va(2)
    class Rec:
        def __init__(self): self.l = []
        def __call__(self, x): self.l.append(x)
    rec = Rec()
    for m in range(2):
        b = ST + 8 * m
        for n in range(2):
            rec('v_add_f32 %s, %s, %s' % (v(b + n), v(b + n), v(b + 2 + n)))
            rec('v_add_f32 %s, %s, %s' % (v(b + 4 + n), v(b + 4 + n), v(b + 6 + n)))
        for n in range(2):
            rec('v_add_f32 %s, %s, %s' % (v(b + n), v(b + n), v(b + 4 + n)))
    rr = [Rec() for n in range(4)]
    for n in range(4):
        x = ST + 8 * (n // 2) + n % 2
        qsum(rr[n], x, x + 2)
    for grp in zip(*[r.l for r in rr]):
        rec.l += list(grp)
    rr = [Rec(), Rec()]
    for m in range(2):
        r_ = rr[m]
        sm, sq = ST + 8 * m, ST + 8 * m + 1
        r_('v_mul_f32 %s, 0xbacccccd, %s' % (v(sm), v(sm)))
        r_('v_mul_f32 %s, 0x3acccccd, %s' % (v(sq), v(sq)))
        r_('v_fma_f32 %s, -%s, %s, %s' % (v(sq), v(sm), v(sm), v(sq)))
        r_('v_max_f32 %s, 0, %s' % (v(sq), v(sq)))
        rnd_bf16(r_, sq, sq)
        rnd_bf16(r_, sm, sm)
        r_('v_add_f32 %s, 0x3727c5ac, %s' % (v(sq), v(sq)))
        rnd_bf16(r_, sq, sq)
        r_('v_sqrt_f32 %s, %s' % (v(sq), v(sq)))
        rnd_bf16(r_, SD + m, sq)
        r_('v_rcp_f32 %s, %s' % (v(sq), v(SD + m)))
        r_('v_mul_f32 %s, 0x%x, %s' % (v(C1 + m), f32_bits(G1), v(sq)))
        r_('v_mul_f32 %s, %s, %s' % (v(sq + 1), v(sq), v(sq)))
        r_('v_mul_f32 %s, 0x%x, %s' % (v(sq), f32_bits(G2), v(sq)))
        r_('v_mul_f32 %s, %s, %s' % (v(C2 + m), v(sq + 1), v(sq)))
    for grp in zip(*[r.l for r in rr]):
        rec.l += list(grp)
    stat_ops = rec.l
    FB = [[va(4, 4) for n in range(6)] for b in range(2)]
    lab1 = k.newlabel('nh1')
    k('s_cmp_lg_u32 s19, 0')
    k('s_cbranch_scc1 %s' % lab1)
    sv = k.save()
    tok0 = dict(tok)
    for nh in range(2):
        if nh:
            k.label(lab1)
            k.restore(sv)
            tok.clear(); tok.update(tok0)
        nw = 4 - nh
        def reads(ks):
            off = (ks % RK) * 16384
            w, off = off >> 16, off & 0xffff
            B = FB[ks % 2]
            L = ['ds_read_b128 %s, %s offset:%d' % (v(B[0], 4), v(la[w]), off),
                 'ds_read_b128 %s, %s offset:%d' % (v(B[2], 4), v(lw[w]), off),
                 'ds_read_b128 %s, %s offset:%d' % (v(B[1], 4), v(la[w]), off + 1024)]
            return L + ['ds_read_b128 %s, %s offset:%d' % (v(B[2 + t], 4), v(lw[w]), off + t * 1024) for t in range(1, nw)]
        def mfmas(ks):
            B = FB[ks % 2]
            return ['%s %s, %s, %s, %s' % (MFMA, v(acc[m][t], 4), v(B[2 + t], 4), v(B[m], 4), v(acc[m][t], 4) if ks else '0') for t in range(nw) for m in range(2)]
        nxt = PD
        freed = 0
        for ks in range(NK + 1):
            fill = []
            if ks < NK:
                if ks % BS == 0:
                    k.barrier(vm=tok[min(NK - 1, ks + BS - 1)], lg=False)
                    if ks // BS < 9: k.stamp(3 + ks // BS)
                    freed = max(0, ks - 1)
                fill = reads(ks)
                ld = []
                while nxt < NK and nxt <= ks + PD and nxt + 1 - RK <= freed:
                    ld += [dma(nxt, 0), dma(nxt, 1)]
                    nxt += 1
                f2 = []
                for n, x in enumerate(fill):
                    f2.append(x)
                    if n in (2, 4) and ld:
                        f2.append(ld.pop(0))
                fill = f2 + ld
                if ks >= 6:
                    n8 = 8 * (ks - 6)
                    ex = stat_ops[n8:n8 + 8]
                    f2 = []
                    for n, x in enumerate(fill):
                        f2.append(x)
                        f2 += ex[2 * n:2 * n + 2] if n < 4 else []
                    fill = f2
            if ks:
                weave(k, mfmas(ks - 1), fill)
            else:
                for x in fill:
                    x() if callable(x) else k(x)
        assert nxt == NK and 8 * (NK - 6) >= len(stat_ops)
        k.stamp(12)
        T = FB[0][0]
        n = 0
        for p in range(2):
            for m in range(2):
                half = nh and p
                tiles = [2] if half else [2 * p, 2 * p + 1]
                xs = [acc[m][t] + r for t in tiles for r in range(4)]
                ts = [T + i for i in range(len(xs))]
                cs = [CS + 4 * t + r for t in tiles for r in range(4)]
                for x_, c_ in zip(xs, cs):
                    k('v_fma_f32 %s, %s, %s, %s' % (v(x_), v(c_), v(ST + 8 * m), v(x_)))
                for x_, t_ in zip(xs, ts):
                    k('v_mul_f32 %s, %s, %s' % (v(t_), v(x_), v(x_)))
                for x_, t_ in zip(xs, ts):
                    k('v_fma_f32 %s, %s, %s, %s' % (v(t_), v(t_), v(C2 + m), v(C1 + m)))
                for x_, t_ in zip(xs, ts):
                    k('v_mul_f32 %s, %s, %s' % (v(t_), v(t_), v(x_)))
                for x_, t_ in zip(xs, ts):
                    k('v_exp_f32 %s, %s' % (v(t_), v(t_)))
                for x_, t_ in zip(xs, ts):
                    k('v_fma_f32 %s, %s, %s, %s' % (v(t_), v(t_), v(SD + m), v(SD + m)))
                for x_, t_ in zip(xs, ts):
                    k('v_rcp_f32 %s, %s' % (v(t_), v(t_)))
                for x_, t_ in zip(xs, ts):
                    k('v_mul_f32 %s, %s, %s' % (v(x_), v(x_), v(t_)))
                Pp = FB[1][n]
                n += 1
                if not half:
                    for r in range(4):
                        k('v_cvt_pk_bf16_f32 %s, %s, %s' % (v(Pp + r), v(xs[r]), v(xs[4 + r])))
                    k('buffer_store_dwordx4 %s, %s, s[12:15], %s offen offset:%d' % (v(Pp, 4), v(l16), s(32 + p), m * 1024))
                else:
                    for r in range(2):
                        k('v_cvt_pk_bf16_f32 %s, %s, %s' % (v(Pp + r), v(xs[2 * r]), v(xs[2 * r + 1])))
                    k('buffer_store_dwordx2 %s, %s, s[12:15], s35 offen offset:%d' % (v(Pp, 2), v(ho), m * 1024))
        k.end()
```

```python
import re, copy

TRANS = ('v_exp_f32', 'v_log_f32', 'v_rcp_f32', 'v_rsq_f32', 'v_sqrt_f32', 'v_sin_f32', 'v_cos_f32',
         'v_rcp_iflag_f32', 'v_exp_f16', 'v_log_f16', 'v_rcp_f16', 'v_rsq_f16', 'v_sqrt_f16')
DPPW = ('quad_perm', 'row_shr', 'row_shl', 'row_ror', 'row_bcast', 'row_mirror', 'row_half_mirror',
        'wave_shl', 'wave_shr', 'wave_rol', 'wave_ror', 'row_newbcast')
REG = re.compile(r'^(-|\|)?\|?([vas])(\d+|\[(\d+):(\d+)\])\|?$')


def regs_of(tok):
    tok = tok.strip()
    if tok.startswith('-'):
        tok = tok[1:]
    tok = tok.strip('|')
    if tok.startswith('abs(') or tok.startswith('neg('):
        tok = tok[4:-1]
    if tok == 'vcc':
        return {('s', 106), ('s', 107)}
    if tok == 'vcc_lo':
        return {('s', 106)}
    if tok == 'vcc_hi':
        return {('s', 107)}
    if tok == 'exec':
        return {('s', 126), ('s', 127)}
    if tok == 'exec_lo':
        return {('s', 126)}
    if tok == 'exec_hi':
        return {('s', 127)}
    if tok == 'm0':
        return {('s', 124)}
    m = re.match(r'^([vas])(\d+)$', tok)
    if m:
        return {(m.group(1), int(m.group(2)))}
    m = re.match(r'^([vas])\[(\d+):(\d+)\]$', tok)
    if m:
        return {(m.group(1), i) for i in range(int(m.group(2)), int(m.group(3)) + 1)}
    return set()


def split_ops(s):
    ops, cur, depth = [], '', 0
    for ch in s:
        if ch in '[(':
            depth += 1
        if ch in '])':
            depth -= 1
        if ch == ',' and depth == 0:
            ops.append(cur.strip())
            cur = ''
        else:
            cur += ch
    if cur.strip():
        ops.append(cur.strip())
    mods = ''
    if ops:
        last = ops[-1]
        depth = 0
        for i, ch in enumerate(last):
            if ch in '[(':
                depth += 1
            if ch in '])':
                depth -= 1
            if ch == ' ' and depth == 0:
                ops[-1], mods = last[:i], last[i + 1:]
                break
    return ops, mods


class Ins:
    __slots__ = ('text', 'mn', 'ops', 'mods', 'cls', 'w', 'r', 'slots', 'passes', 'A', 'B', 'C', 'dpp', 'trans',
                 'wide_store', 'lds_dma', 'sdwa_dst', 'target')

    def __init__(self, text):
        self.text = text
        t = text.split(';')[0].strip()
        parts = t.split(None, 1)
        mn = parts[0]
        self.mn = mn
        ops, mods = split_ops(parts[1]) if len(parts) > 1 else ([], '')
        self.ops, self.mods = ops, mods
        self.w, self.r = set(), set()
        self.slots = 1
        self.passes = 0
        self.A = self.B = self.C = set()
        self.dpp = self.trans = self.wide_store = self.lds_dma = self.sdwa_dst = False
        self.target = None
        R = [regs_of(o) for o in ops]
        allr = set().union(*R) if R else set()
        base = re.sub(r'_(e32|e64|dpp|sdwa)$', '', mn)
        if mn.startswith('v_mfma'):
            self.cls = 'mfma'
            self.w = R[0]
            self.A, self.B, self.C = R[1], R[2], R[3]
            self.r = R[1] | R[2] | R[3]
            self.passes = 8 if '32x32' in mn else 4
        elif mn.startswith('v_'):
            self.cls = 'valu'
            if base == 'v_nop':
                pass
            elif base.startswith('v_cmpx'):
                raise ValueError('no cmpx')
            elif 'swap' in base:
                self.w = allr
                self.r = allr
            elif base in ('v_add_co_u32', 'v_sub_co_u32', 'v_subrev_co_u32', 'v_addc_co_u32', 'v_subb_co_u32',
                          'v_mad_u64_u32', 'v_div_scale_f32'):
                self.w = R[0] | R[1]
                self.r = set().union(*R[2:])
            else:
                self.w = R[0]
                self.r = set().union(*R[1:]) if len(R) > 1 else set()
                if base.startswith(('v_fmac', 'v_mac', 'v_pk_fmac', 'v_dot2c', 'v_writelane')):
                    self.r |= R[0]
                if base == 'v_cndmask_b32' and len(ops) == 3:
                    self.r |= regs_of('vcc')
            self.dpp = any(d in mods for d in DPPW)
            if self.dpp:
                self.r |= self.w
            self.trans = base in TRANS
            self.sdwa_dst = ('dst_sel' in mods and 'dst_sel:DWORD' not in mods)
        elif mn.startswith(('buffer_', 'global_')):
            self.cls = 'vmem'
            ml = mods.split()
            if 'load' in mn:
                if 'lds' in ml or '_lds_' in mn:
                    self.lds_dma = True
                    self.r = allr | regs_of('m0')
                else:
                    self.w = R[0]
                    self.r = set().union(*R[1:])
            elif 'atomic' in mn:
                if 'sc0' in ml:
                    self.w = R[0]
                self.r = allr
            else:
                self.r = allr
                self.wide_store = ('x3' in mn or 'x4' in mn)
                if self.wide_store:
                    self.A = R[0] if mn.startswith('buffer_') else R[1]
        elif mn.startswith('ds_'):
            self.cls = 'ds'
            if mn.startswith(('ds_read', 'ds_bpermute', 'ds_permute', 'ds_swizzle')) or '_rtn' in mn:
                self.w = R[0]
                self.r = set().union(*R[1:])
            else:
                self.r = allr
        elif mn.startswith(('s_load', 's_buffer_load', 's_memtime', 's_memrealtime')):
            self.cls = 'smem'
            self.w = R[0]
            self.r = set().union(*R[1:]) if len(R) > 1 else set()
        elif mn.startswith('s_'):
            self.cls = 'salu'
            if mn == 's_nop':
                self.slots = int(ops[0], 0) + 1
            elif mn.startswith(('s_cbranch', 's_branch')):
                self.target = ops[0]
            elif mn.startswith(('s_cmp', 's_waitcnt', 's_barrier', 's_endpgm', 's_setprio', 's_sleep', 's_bitcmp')):
                self.r = allr
            else:
                self.w = R[0]
                self.r = set().union(*R[1:]) if len(R) > 1 else set()
                if 'saveexec' in mn:
                    self.w |= regs_of('exec')
        else:
            raise ValueError('unknown instr ' + text)


def vg(s):
    return {x for x in s if x[0] in 'va'}


def sg(s):
    return {x for x in s if x[0] == 's'}


def need_states(p, c):
    n = 0
    if p.cls == 'valu':
        pw, ps = vg(p.w), sg(p.w)
        if p.mn.startswith('v_dot') and pw & (c.r | c.w):
            same_c = (c.mn == p.mn and not (pw & (regs_of(c.ops[1]) | regs_of(c.ops[2]))))
            if not same_c:
                n = max(n, 3)
        if c.cls == 'mfma' and pw & c.r:
            n = max(n, 2)
        if c.cls == 'valu':
            if c.dpp and pw & c.r:
                n = max(n, 2)
            if 'permlane' in c.mn and pw & c.r:
                n = max(n, 2)
            if c.mn.startswith(('v_readlane', 'v_readfirstlane')) and pw & c.r:
                n = max(n, 1)
            if p.trans and pw & (c.r | c.w):
                n = max(n, 1)
            if p.sdwa_dst and pw & (c.r | c.w):
                n = max(n, 1)
            if ps & c.r:
                n = max(n, 4 if c.mn.startswith(('v_readlane', 'v_writelane', 'v_div_fmas')) else 2)
        if c.cls == 'vmem' and ps & c.r:
            n = max(n, 5)
        if c.cls in ('salu', 'smem') and ps & c.r:
            n = max(n, 1)
    elif p.cls == 'mfma':
        big = 8 if p.passes == 4 else 12
        if c.cls == 'mfma':
            if p.w & (c.A | c.B):
                n = max(n, big)
            if p.w & c.C:
                if not (p.w == c.C and p.passes == c.passes):
                    n = max(n, 6 if p.passes == 4 else 10)
            elif p.w & c.w:
                n = max(n, big)
        elif c.cls in ('valu', 'vmem', 'ds'):
            if p.w & (c.r | c.w):
                n = max(n, big)
            if c.cls == 'valu' and p.C & c.w:
                n = max(n, 3 if p.passes == 4 else 7)
            if c.cls in ('vmem', 'ds') and p.C & c.w:
                n = max(n, 3 if p.passes == 4 else 7)
    elif p.cls == 'vmem':
        if p.wide_store and p.A & c.w:
            n = max(n, 2)
    elif p.cls == 'salu':
        if ('s', 124) in p.w and c.cls == 'vmem' and c.lds_dma:
            n = max(n, 1)
        if ({('s', 126), ('s', 127)} & p.w) and c.cls == 'valu' and c.dpp:
            n = max(n, 1)
    if p.cls == 'ds' and p.mn.startswith('ds_write') and ('b128' in p.mn or 'b96' in p.mn):
        if c.cls == 'valu' and (p.r & c.w):
            n = max(n, 1)
    return n


class Kern:
    def __init__(self, name):
        self.name = name
        self.out = []
        self.vmq = []
        self.lgq = []
        self.nid = 0
        self.hist = []
        self.lbl = 0
        self.maxv = -1
        self.maxa = -1
        self.maxs = -1
        self.nops = 0
        self.prof = None
        self.nst = 0

    def stamp(self, n):
        if self.prof is not None:
            self.op('s_memrealtime s[%d:%d]' % (64 + 2 * n, 65 + 2 * n))
            self.nst = max(self.nst, n + 1)

    def cstamp(self, n):
        if self.prof is not None:
            self.op('s_memtime s[%d:%d]' % (64 + 2 * n, 65 + 2 * n))

    def _raw(self, ins):
        need = 0
        dist = 0
        for p in reversed(self.hist):
            if dist >= 20:
                break
            need = max(need, need_states(p, ins) - dist)
            dist += p.slots
        while need > 0:
            n = min(need, 16)
            nop = Ins('s_nop %d' % (n - 1))
            self.out.append(nop)
            self.hist.append(nop)
            self.nops += n
            need -= n
        self.out.append(ins)
        self.hist.append(ins)
        if len(self.hist) > 40:
            self.hist = self.hist[-24:]
        for (t, i) in ins.w | ins.r:
            if t == 'v':
                self.maxv = max(self.maxv, i)
            elif t == 'a':
                self.maxa = max(self.maxa, i)
            elif i < 102:
                self.maxs = max(self.maxs, i)

    def _wait(self, vm=None, lg=None):
        parts = []
        if vm is not None:
            vm = min(vm, 63)
            parts.append('vmcnt(%d)' % vm)
            self.vmq = self.vmq[len(self.vmq) - vm:] if vm else []
        if lg is not None:
            lg = min(lg, 15)
            parts.append('lgkmcnt(%d)' % lg)
            self.lgq = self.lgq[len(self.lgq) - lg:] if lg else []
        if parts:
            self._raw(Ins('s_waitcnt ' + ' '.join(parts)))

    def __call__(self, text):
        for line in text.strip().split('\n'):
            line = line.strip()
            if not line or line.startswith(';'):
                continue
            self.op(line)

    def op(self, text):
        ins = Ins(text)
        touch = ins.r | ins.w
        vm = lg = None
        for idx in range(len(self.vmq) - 1, -1, -1):
            w = self.vmq[idx][1]
            hit = w & (ins.r if ins.cls == 'vmem' else touch)
            if hit:
                vm = len(self.vmq) - 1 - idx
                break
        anysm = any(e[2] for e in self.lgq)
        for idx in range(len(self.lgq) - 1, -1, -1):
            w = self.lgq[idx][1]
            hit = w & (ins.r if (ins.cls == 'ds' and not self.lgq[idx][2]) else touch)
            if hit:
                lg = 0 if anysm else len(self.lgq) - 1 - idx
                break
        self._wait(vm, lg)
        self._raw(ins)
        self.nid += 1
        if ins.cls == 'vmem':
            self.vmq.append((self.nid, set(ins.w)))
        elif ins.cls == 'ds':
            self.lgq.append((self.nid, set(ins.w), False))
        elif ins.cls == 'smem':
            self.lgq.append((self.nid, set(ins.w), True))
        return self.nid

    def wait_vm(self, token=None):
        if token is None:
            if self.vmq:
                self._wait(vm=0)
            return
        for idx, e in enumerate(self.vmq):
            if e[0] == token:
                self._wait(vm=len(self.vmq) - 1 - idx)
                return

    def wait_lg(self):
        if self.lgq:
            self._wait(lg=0)

    def barrier(self, vm=False, lg=True):
        if vm is True:
            self.wait_vm()
        elif vm:
            self.wait_vm(vm)
        if lg:
            self.wait_lg()
        self._raw(Ins('s_barrier'))

    def label(self, name):
        self.out.append(name + ':')

    def newlabel(self, hint='L'):
        self.lbl += 1
        return '.L%s_%s%d' % (self.name, hint, self.lbl)

    def comment(self, s):
        self.out.append('; ' + s)

    def save(self):
        return (list(self.vmq), list(self.lgq), list(self.hist))

    def restore(self, st):
        self.vmq, self.lgq, self.hist = list(st[0]), list(st[1]), list(st[2])

    def end(self):
        if self.prof is not None and self.nst:
            kidx, off = self.prof
            self.stamp(14)
            self._raw(Ins('s_waitcnt vmcnt(0) lgkmcnt(0)'))
            self.vmq, self.lgq = [], []
            self.stamp(15)
            self('v_lshrrev_b32 v1, 6, v0')
            self('v_and_b32 v2, 63, v0')
            self('v_readfirstlane_b32 s100, v1')
            self('s_add_u32 s96, s16, 0x%x' % off)
            self('s_addc_u32 s97, s17, 0')
            self('s_mov_b32 s98, 0x%x' % (8 * 1024 * 16 * 64))
            self('s_mov_b32 s99, 0x00020000')
            self('s_add_u32 s101, s2, %d' % (kidx * 1024))
            self('s_lshl_b32 s101, s101, 4')
            self('s_add_u32 s101, s101, s100')
            self('s_lshl_b32 s101, s101, 6')
            self('v_mov_b32 v1, 0')
            for n in range(16):
                self('v_writelane_b32 v1, s%d, %d' % (64 + 2 * n, n))
            self('v_lshlrev_b32 v3, 2, v2')
            self('v_cmp_gt_u32 vcc, 16, v2')
            self('v_mov_b32 v2, 0x40000000')
            self('v_cndmask_b32 v3, v2, v3, vcc')
            self('buffer_store_dword v1, v3, s[96:99], s101 offen')
            self.nst = 0
        self._raw(Ins('s_endpgm'))
        self.vmq, self.lgq, self.hist = [], [], []

    def check_branches(self):
        lab = {o[:-1]: i for i, o in enumerate(self.out) if isinstance(o, str) and o.endswith(':')}
        for i, o in enumerate(self.out):
            if isinstance(o, Ins) and o.target in lab:
                hist = [x for x in self.out[max(0, i - 30):i + 1] if isinstance(x, Ins)]
                j = lab[o.target]
                cnt = 0
                while j < len(self.out) and cnt < 22:
                    c = self.out[j]
                    j += 1
                    if not isinstance(c, Ins):
                        continue
                    dist = 0
                    for p in reversed(hist):
                        if need_states(p, c) > dist:
                            raise RuntimeError('hazard across branch %s: %s -> %s' % (o.text, p.text, c.text))
                        dist += p.slots
                    hist.append(c)
                    cnt += c.slots
                    if c.mn in ('s_branch', 's_endpgm'):
                        break

    def text(self):
        self.check_branches()
        L = []
        for o in self.out:
            L.append(o if isinstance(o, str) else '  ' + o.text)
        return '\n'.join(L)

    def ninstr(self):
        return sum(1 for o in self.out if isinstance(o, Ins))


def v(i, n=1):
    return 'v%d' % i if n == 1 else 'v[%d:%d]' % (i, i + n - 1)


def a(i, n=1):
    return 'a%d' % i if n == 1 else 'a[%d:%d]' % (i, i + n - 1)


def s(i, n=1):
    return 's%d' % i if n == 1 else 's[%d:%d]' % (i, i + n - 1)


class Alloc:
    def __init__(self, start=0, limit=256):
        self.n = start
        self.limit = limit

    def __call__(self, n=1, align=1):
        if n > 1:
            align = max(align, 2)
        self.n = (self.n + align - 1) // align * align
        r = self.n
        self.n += n
        assert self.n <= self.limit, 'out of registers'
        return r
```

```python
import numpy as np
from lib import *

S, D, DF, F = 2048, 640, 321, 1728
BLK = 324 * 128
def al(x, a=4096): return (x + a - 1) // a * a
WS = {}
_off = 0
def region(name, nbytes):
    global _off
    WS[name] = (_off, nbytes)
    _off = al(_off + nbytes)
region('XB', 64 * BLK)
region('WB', 64 * BLK)
region('Z', DF * S * 4)
region('H', 20 * S * 64)
region('ST0', S * 8)
HHR = S + 4
region('HH', 20 * HHR * 64)
region('X1', 20 * S * 64)
region('ST1', S * 128)
region('G', 54 * S * 64)
region('W1F', 4 * 20 * 10 * 1024)
region('W2F', 8 * 20 * 5 * 1024)
region('W3F', 16 * 20 * 7 * 1024)
region('W4F', 8 * 56 * 5 * 1024)
region('CS3', 112 * 16 * 4)
region('CS1', 40 * 16 * 4)

region('PROF', 8 * 1024 * 16 * 64)
import os
PROF = os.environ.get('PROF') == '1'
_kidx = [0]
def newkern(name):
    k = Kern(name)
    if PROF:
        k.prof = (_kidx[0], WS['PROF'][0])
    _kidx[0] += 1
    return k

KA = dict(x=0, wr=8, wi=16, w1=32, w2=40, w3=48, w4=56, out=64, dbg=72, ws=80)


def bf16_bits(x):
    x = np.asarray(x, dtype=np.float32)
    u = x.view(np.uint32).astype(np.uint64)
    r = (u + 0x7fff + ((u >> 16) & 1)) >> 16
    return (r & 0xffff).astype(np.uint32)


def pack_frag(M):
    b = bf16_bits(M)
    return (b[:, 0::2] | (b[:, 1::2] << 16)).astype(np.uint32)


def f32_bits(x):
    return np.asarray(x, dtype=np.float32).view(np.uint32)


def table_text(label, words):
    words = np.asarray(words, dtype=np.uint32).ravel()
    L = ['.p2align 8', label + ':']
    for i in range(0, len(words), 8):
        L.append('.long ' + ','.join('0x%x' % w for w in words[i:i + 8]))
    return '\n'.join(L)


def srd_from(k, dst, base, off, nbytes):
    if off:
        k('s_add_u32 %s, %s, 0x%x' % (s(dst), s(base), off))
        k('s_addc_u32 %s, %s, 0' % (s(dst + 1), s(base + 1)))
    elif dst != base:
        k('s_mov_b32 %s, %s' % (s(dst), s(base)))
        k('s_mov_b32 %s, %s' % (s(dst + 1), s(base + 1)))
    k('s_mov_b32 %s, 0x%x' % (s(dst + 2), nbytes))
    k('s_mov_b32 %s, 0x00020000' % s(dst + 3))


def srd_ws(k, dst, wsbase, name):
    off, n = WS[name]
    srd_from(k, dst, wsbase, off, n)


def srd_table(k, dst, label, nbytes):
    l = k.newlabel('pc')
    k('s_getpc_b64 %s' % s(dst, 2))
    k.label(l)
    k('s_add_u32 %s, %s, %s-%s' % (s(dst), s(dst), label, l))
    k('s_addc_u32 %s, %s, 0' % (s(dst + 1), s(dst + 1)))
    k('s_mov_b32 %s, 0x%x' % (s(dst + 2), nbytes))
    k('s_mov_b32 %s, 0x00020000' % s(dst + 3))


def kernel_text(k, tables=''):
    nv = k.maxv + 1
    acc = (max(nv, 4) + 3) // 4 * 4
    na = k.maxa + 1
    nfv = acc + na if na else max(nv, 1)
    code = '.globl %s\n.p2align 8\n.type %s,@function\n%s:\n%s\n%s\n' % (k.name, k.name, k.name, k.text(), tables)
    desc = ('.p2align 6\n.amdhsa_kernel %s\n  .amdhsa_next_free_vgpr %d\n  .amdhsa_next_free_sgpr 102\n'
            '  .amdhsa_accum_offset %d\n  .amdhsa_group_segment_fixed_size 0\n  .amdhsa_kernarg_size 88\n'
            '  .amdhsa_user_sgpr_count 2\n  .amdhsa_user_sgpr_kernarg_segment_ptr 1\n'
            '  .amdhsa_system_sgpr_workgroup_id_x 1\n.end_amdhsa_kernel\n') % (k.name, nfv, acc)
    return code, desc


MFMA = 'v_mfma_f32_16x16x32_bf16'
```

```python
from common import *

def k1_tables():
    lane = np.arange(64)
    i, q = lane % 16, lane // 16
    j = np.arange(8)
    a_ = 5 * q[:, None] + j[None, :]
    valid = (j[None, :] < 5) & (i[:, None] <= 10)
    th = 2 * np.pi * a_ * i[:, None] / 20
    f20r = np.where(valid, np.cos(th), 0)
    f20i = np.where(valid, -np.sin(th), 0)
    b_ = 8 * q[:, None] + j[None, :]
    fr, fi = [], []
    for ct in range(2):
        c = 16 * ct + i[:, None]
        th = 2 * np.pi * ((b_ * c) % 32) / 32
        fr.append(np.cos(th))
        fi.append(-np.sin(th))
    frags = [f20r, f20i, fr[0], -fi[0], fi[0], fr[1], -fi[1], -fr[1]]
    words = [pack_frag(f) for f in frags]
    sc = np.where((i == 0) | (i == 10), 1.0, 2.0) / (S * D)
    for t in range(2):
        r = np.arange(4)
        b = 8 * q[:, None] + 2 * r[None, :] + t
        th = 2 * np.pi * b * i[:, None] / 640
        words.append(f32_bits(np.cos(th) * sc[:, None]))
        words.append(f32_bits(np.sin(th) * sc[:, None]))
    return np.concatenate([w.ravel() for w in words])


def rnd_bf16(k, d, x):
    k('v_cvt_pk_bf16_f32 %s, %s, %s' % (v(d), v(x), v(x)))
    k('v_lshlrev_b32 %s, 16, %s' % (v(d), v(d)))


def fl(x):
    return '0x%x' % int(f32_bits(x))


def blk_map(k, src):
    k('s_and_b32 s40, %s, 7' % src)
    k('s_lshr_b32 s41, %s, 5' % src)
    k('s_lshl_b32 s41, s41, 3')
    k('s_add_u32 s40, s40, s41')
    k('s_bfe_u32 s41, %s, 0x20003' % src)
    k('s_lshl_b32 s3, s40, 2')
    k('s_add_u32 s3, s3, s41')
    k('s_mul_i32 s40, s40, %d' % BLK)
    k('s_lshl_b32 s41, s41, 5')
    k('s_add_u32 s40, s40, s41')


def emit_fft_role(k):
    va = Alloc(1, 128)
    sx, so = 4, 12
    sws = 16
    k.stamp(0)
    k('s_load_dwordx2 s[4:5], s[0:1], %d' % KA['x'])
    k('s_load_dwordx2 s[16:17], s[0:1], %d' % KA['ws'])
    ti, tq, xo, fi, fq = va(), va(), va(), va(), va()
    k('v_lshrrev_b32 %s, 6, v0' % v(ti))
    k('v_bfe_u32 %s, v0, 4, 2' % v(tq))
    k('v_readfirstlane_b32 s20, %s' % v(ti))
    k('v_and_b32 %s, 15, v0' % v(ti))
    k('v_mul_u32_u24 %s, 320, %s' % (v(xo), v(tq)))
    k('v_lshl_add_u32 %s, %s, 2, %s' % (v(xo), v(ti), v(xo)))
    blk_map(k, 's2')
    k('s_lshr_b32 s22, s3, 3')
    k('s_and_b32 s23, s3, 7')
    k('s_lshl_b32 s23, s23, 3')
    k('s_lshl_b32 s24, s20, 1')
    k('s_add_u32 s23, s23, s24')
    k('s_lshl_b32 s23, s23, 5')
    k('s_add_u32 s23, s23, s22')
    k('s_mul_i32 s24, s23, 1280')
    k('s_add_u32 s25, s24, %d' % (32 * 1280))
    k('s_mov_b32 s6, 0x%x' % (S * D * 2))
    k('s_mov_b32 s7, 0x00020000')
    X = [va(5), va(5)]
    for row in range(2):
        for m in range(5):
            k('buffer_load_dword %s, %s, %s, %s offen offset:%d' % (v(X[row] + m), v(xo), s(sx, 4), s(24 + row), 64 * m))
    k.stamp(1)
    T = va(48, 4)
    F20R, F20I = T, T + 4
    A = [T + 8 + 4 * n for n in range(6)]
    TC = [T + 32, T + 40]
    TS = [T + 36, T + 44]
    AF = [[va(4, 4), va(4, 4)], [va(4, 4), va(4, 4)]]
    D1 = [[[va(4, 4), va(4, 4)] for t in range(2)] for row in range(2)]
    W = D1[0][0][0]
    an, cs, sn, stp = W, W + 8, W + 16, W + 24
    k('v_cvt_f32_u32 %s, %s' % (v(fi), v(ti)))
    k('v_cvt_f32_u32 %s, %s' % (v(fq), v(tq)))
    k('v_mul_f32 %s, %s, %s' % (v(fq), v(fq), v(fi)))
    def angles(n, base_mul, step_mul):
        k('v_mul_f32 %s, %s, %s' % (v(an), fl(base_mul), v(fq)))
        k('v_mul_f32 %s, %s, %s' % (v(stp), fl(step_mul), v(fi)))
        for j in range(1, n):
            k('v_add_f32 %s, %s, %s' % (v(an + j), v(an + j - 1), v(stp)))
    angles(5, 0.25, 0.05)
    for j in range(5):
        k('v_cos_f32 %s, %s' % (v(cs + j), v(an + j)))
        k('v_sin_f32 %s, %s' % (v(sn + j), v(an + j)))
    for j in range(3):
        j2 = min(2 * j + 1, 4)
        k('v_cvt_pk_bf16_f32 %s, %s, %s' % (v(F20R + j), v(cs + 2 * j), v(cs + j2)))
        k('v_cvt_pk_bf16_f32 %s, -%s, -%s' % (v(F20I + j), v(sn + 2 * j), v(sn + j2)))
    k('v_mov_b32 %s, 0' % v(F20R + 3))
    k('v_mov_b32 %s, 0' % v(F20I + 3))
    angles(8, 0.25, 1 / 32)
    for j in range(8):
        k('v_cos_f32 %s, %s' % (v(cs + j), v(an + j)))
        k('v_sin_f32 %s, %s' % (v(sn + j), v(an + j)))
    k('s_mov_b32 s44, 0x80008000')
    k('s_mov_b32 s45, 0x80000000')
    k('s_mov_b32 s46, 0x8000')
    for j in range(4):
        k('v_cvt_pk_bf16_f32 %s, %s, %s' % (v(A[0] + j), v(cs + 2 * j), v(cs + 2 * j + 1)))
        k('v_cvt_pk_bf16_f32 %s, %s, %s' % (v(A[1] + j), v(sn + 2 * j), v(sn + 2 * j + 1)))
    for j in range(4):
        k('v_xor_b32 %s, s44, %s' % (v(A[2] + j), v(A[1] + j)))
        k('v_xor_b32 %s, s45, %s' % (v(A[3] + j), v(A[0] + j)))
        k('v_xor_b32 %s, s45, %s' % (v(A[4] + j), v(A[1] + j)))
        k('v_xor_b32 %s, s46, %s' % (v(A[5] + j), v(A[0] + j)))
    angles(8, 8 / 640, 1 / 640)
    for j in range(8):
        k('v_cos_f32 %s, %s' % (v(TC[j & 1] + (j >> 1)), v(an + j)))
        k('v_sin_f32 %s, %s' % (v(TS[j & 1] + (j >> 1)), v(an + j)))
    srd_ws(k, so, sws, 'XB')
    b0, b1, ce, scl = xo, va(), fi, fq
    tmp = va()
    k('v_mul_u32_u24 %s, 80, %s' % (v(tmp), v(tq)))
    k('v_add_u32 %s, %s, %s' % (v(tmp), v(tmp), v(ti)))
    k('s_lshl_b32 s26, s20, 3')
    k('v_mov_b32 %s, s26' % v(b1))
    k('v_mad_u32_u24 %s, %s, 40, %s' % (v(b0), v(tmp), v(b1)))
    k('v_sub_u32 %s, 260, %s' % (v(tmp), v(tmp)))
    k('v_mad_u32_u24 %s, %s, 40, %s' % (v(b1), v(tmp), v(b1)))
    k('v_cmp_lt_u32 vcc, 10, %s' % v(ti))
    k('v_mov_b32 %s, 13312' % v(tmp))
    k('v_cndmask_b32 %s, %s, %s, vcc' % (v(b0), v(b0), v(tmp)))
    k('v_cndmask_b32 %s, %s, %s, vcc' % (v(b1), v(b1), v(tmp)))
    k('v_mov_b32 %s, %s' % (v(scl), fl(2.0 / (S * D))))
    k('v_mov_b32 %s, %s' % (v(tmp), fl(1.0 / (S * D))))
    k('v_cmp_eq_u32 vcc, 10, %s' % v(ti))
    k('v_cndmask_b32 %s, %s, %s, vcc' % (v(scl), v(scl), v(tmp)))
    k('v_cmp_eq_u32 vcc, 0, %s' % v(ti))
    k('v_cndmask_b32 %s, %s, %s, vcc' % (v(scl), v(scl), v(tmp)))
    k('v_mov_b32 %s, %s' % (v(tmp), fl(-20.0 / (S * D))))
    k('v_cndmask_b32 %s, 0, %s, vcc' % (v(ce), v(tmp)))
    k('s_mov_b32 s27, 0x3f803f80')
    k('s_mov_b32 s28, 0x05040100')
    k('s_mov_b32 s29, 0x07060302')
    k('s_mov_b32 s30, 0xffff')
    st4 = va(4)
    for row in range(2):
        for t in range(2):
            k('v_mov_b32 %s, 0' % v(AF[row][t] + 3))
    for n in range(4):
        k('v_mov_b32 %s, 0' % v(st4 + n))
    k.stamp(2)
    for row in range(2):
        x = X[row]
        for t in range(2):
            sel = 's28' if t == 0 else 's29'
            k('v_perm_b32 %s, %s, %s, %s' % (v(AF[row][t]), v(x + 1), v(x), sel))
            k('v_perm_b32 %s, %s, %s, %s' % (v(AF[row][t] + 1), v(x + 3), v(x + 2), sel))
            if t == 0:
                k('v_and_b32 %s, s30, %s' % (v(AF[row][t] + 2), v(x + 4)))
            else:
                k('v_lshrrev_b32 %s, 16, %s' % (v(AF[row][t] + 2), v(x + 4)))
    for m in range(5):
        for row in range(2):
            x = X[row]
            k('v_dot2_f32_bf16 %s, %s, s27, %s' % (v(st4 + 2 * row), v(x + m), v(st4 + 2 * row)))
            k('v_dot2_f32_bf16 %s, %s, %s, %s' % (v(st4 + 2 * row + 1), v(x + m), v(x + m), v(st4 + 2 * row + 1)))
    for row in range(2):
        for t in range(2):
            k('%s %s, %s, %s, 0' % (MFMA, v(D1[row][t][0], 4), v(AF[row][t], 4), v(F20R, 4)))
            k('%s %s, %s, %s, 0' % (MFMA, v(D1[row][t][1], 4), v(AF[row][t], 4), v(F20I, 4)))
    k.stamp(3)
    s0, q0, s1, q1 = st4, st4 + 1, st4 + 2, st4 + 3
    k('v_permlane32_swap_b32 %s, %s' % (v(s0), v(q0)))
    k('v_permlane32_swap_b32 %s, %s' % (v(s1), v(q1)))
    k('v_add_f32 %s, %s, %s' % (v(s0), v(s0), v(q0)))
    k('v_add_f32 %s, %s, %s' % (v(s1), v(s1), v(q1)))
    k('v_permlane16_swap_b32 %s, %s' % (v(s0), v(s1)))
    k('v_add_f32 %s, %s, %s' % (v(s0), v(s0), v(s1)))
    for m in ('quad_perm:[1,0,3,2]', 'quad_perm:[2,3,0,1]', 'row_half_mirror', 'row_mirror'):
        k('v_add_f32_dpp %s, %s, %s %s row_mask:0xf bank_mask:0xf' % (v(s0), v(s0), v(s0), m))
    k('v_mov_b32 %s, %s' % (v(q0), v(s0)))
    k('v_permlane32_swap_b32 %s, %s' % (v(s0), v(q0)))
    k('v_mul_f32 %s, 0x3acccccd, %s' % (v(s0), v(s0)))
    k('v_mul_f32 %s, 0x3acccccd, %s' % (v(q0), v(q0)))
    k('v_fma_f32 %s, -%s, %s, %s' % (v(q0), v(s0), v(s0), v(q0)))
    k('v_max_f32 %s, 0, %s' % (v(q0), v(q0)))
    rnd_bf16(k, q0, q0)
    rnd_bf16(k, s0, s0)
    k('v_add_f32 %s, 0x3727c5ac, %s' % (v(q0), v(q0)))
    rnd_bf16(k, q0, q0)
    k('v_sqrt_f32 %s, %s' % (v(q0), v(q0)))
    rnd_bf16(k, q0, q0)
    k('v_rcp_f32 %s, %s' % (v(q0), v(q0)))
    k('v_mul_f32 %s, %s, %s' % (v(s0), v(s0), v(q0)))
    k('v_readlane_b32 s32, %s, 0' % v(q0))
    k('v_readlane_b32 s34, %s, 16' % v(q0))
    k('v_readlane_b32 s36, %s, 0' % v(s0))
    k('v_readlane_b32 s37, %s, 16' % v(s0))
    xs = (X[0] + 1) // 2 * 2
    t1, t2 = xs, xs + 4
    add = [F20R, F20R + 2]
    rl = [F20I, F20I + 2]
    for row in range(2):
        k('v_mul_f32 %s, %s, %s' % (v(add[row]), s(36 + row), v(ce)))
        k('v_mul_f32 %s, %s, %s' % (v(rl[row]), s(32 + 2 * row), v(scl)))
    BR = [AF[0][0], AF[1][0]]
    BI = [AF[0][1], AF[1][1]]
    D2 = D1
    for row in range(2):
        sr = v(rl[row], 2)
        for t in range(2):
            dr, di = D1[row][t]
            for h in (0, 2):
                k('v_pk_fma_f32 %s, %s, %s, %s op_sel_hi:[1,0,0]' % (v(dr + h, 2), v(dr + h, 2), sr, v(add[row], 2)))
                k('v_pk_mul_f32 %s, %s, %s op_sel_hi:[1,0]' % (v(di + h, 2), v(di + h, 2), sr))
            for h in (0, 2):
                k('v_pk_mul_f32 %s, %s, %s' % (v(t1 + h, 2), v(di + h, 2), v(TS[t] + h, 2)))
                k('v_pk_mul_f32 %s, %s, %s' % (v(t2 + h, 2), v(dr + h, 2), v(TS[t] + h, 2)))
            for h in (0, 2):
                k('v_pk_fma_f32 %s, %s, %s, %s' % (v(dr + h, 2), v(dr + h, 2), v(TC[t] + h, 2), v(t1 + h, 2)))
                k('v_pk_fma_f32 %s, %s, %s, %s neg_lo:[0,0,1] neg_hi:[0,0,1]' % (v(di + h, 2), v(di + h, 2), v(TC[t] + h, 2), v(t2 + h, 2)))
        for r in range(4):
            k('v_cvt_pk_bf16_f32 %s, %s, %s' % (v(BR[row] + r), v(D1[row][0][0] + r), v(D1[row][1][0] + r)))
            k('v_cvt_pk_bf16_f32 %s, %s, %s' % (v(BI[row] + r), v(D1[row][0][1] + r), v(D1[row][1][1] + r)))
        for half in range(2):
            for ct in range(2):
                ar = (A[0], A[1], A[2], A[0]) if ct == 0 else (A[3], A[4], A[4], A[5])
                o_r, o_i = D2[row][ct]
                if half == 0:
                    k('%s %s, %s, %s, 0' % (MFMA, v(o_r, 4), v(ar[0], 4), v(BR[row], 4)))
                    k('%s %s, %s, %s, 0' % (MFMA, v(o_i, 4), v(ar[2], 4), v(BR[row], 4)))
                else:
                    k('%s %s, %s, %s, %s' % (MFMA, v(o_r, 4), v(ar[1], 4), v(BI[row], 4), v(o_r, 4)))
                    k('%s %s, %s, %s, %s' % (MFMA, v(o_i, 4), v(ar[3], 4), v(BI[row], 4), v(o_i, 4)))
    k.stamp(4)
    ra, ga, ga2 = st4, st4 + 1, st4 + 2
    k('v_and_b32 %s, 1, v0' % v(tmp))
    k('v_mul_u32_u24 %s, 20, v0' % v(ra))
    k('v_lshlrev_b32 %s, 2, %s' % (v(tmp), v(tmp)))
    k('v_sub_u32 %s, %s, %s' % (v(ra), v(ra), v(tmp)))
    k('v_lshrrev_b32 %s, 1, v0' % v(ga))
    k('v_lshlrev_b32 %s, 7, %s' % (v(ga), v(ga)))
    k('v_lshl_add_u32 %s, %s, 2, %s' % (v(ga), v(tmp), v(ga)))
    k('v_cmp_gt_u32 vcc, 130, v0')
    k('v_mov_b32 %s, 0x40000000' % v(tmp))
    k('v_cndmask_b32 %s, %s, %s, vcc' % (v(ga2), v(tmp), v(ga)))
    k('s_add_u32 s41, s40, 16384')
    k('s_add_u32 s42, s40, 32768')
    P = T + 32
    for ct in range(2):
        for r in range(4):
            for row in range(2):
                k('v_cvt_pk_bf16_f32 %s, %s, %s' % (v(P + 8 * ct + 2 * r + row), v(D2[row][ct][0] + r), v(D2[row][ct][1] + r)))
            off = 800 * r if ct == 0 else 800 * (3 - r)
            k('ds_write_b64 %s, %s offset:%d' % (v(b0 if ct == 0 else b1), v(P + 8 * ct + 2 * r, 2), off))
    k.barrier()
    k.stamp(5)
    R = T
    for r in range(3):
        if r == 0:
            k('ds_read2_b64 %s, %s offset0:0 offset1:1' % (v(R, 4), v(ra)))
        else:
            k('v_add_u32 %s, %d, %s' % (v(ra), 5120, v(ra)))
            k('ds_read2_b64 %s, %s offset0:0 offset1:1' % (v(R + 4 * r, 4), v(ra)))
    for r in range(3):
        k('buffer_store_dwordx4 %s, %s, %s, %s offen' % (v(R + 4 * r, 4), v(ga if r < 2 else ga2), s(so, 4), s(40 + r)))
    k.end()


def emit_wt_role(k, wg0):
    va = Alloc(1)
    k.stamp(0)
    k('s_load_dwordx2 s[4:5], s[0:1], %d' % KA['wr'])
    k('s_load_dwordx2 s[8:9], s[0:1], %d' % KA['wi'])
    k('s_load_dwordx2 s[16:17], s[0:1], %d' % KA['ws'])
    k('s_sub_u32 s2, s2, %d' % wg0)
    blk_map(k, 's2')
    if k.prof is not None:
        k('s_add_u32 s2, s2, %d' % wg0)
    lo, so, idx, tmp, big, go = va(3), va(3), va(), va(), va(), va()
    k('v_lshrrev_b32 %s, 6, v0' % v(tmp))
    k('v_and_b32 %s, 63, v0' % v(idx))
    k('v_readfirstlane_b32 s19, %s' % v(tmp))
    k('v_mov_b32 %s, 0x40000000' % v(big))
    k('v_lshlrev_b32 %s, 4, %s' % (v(go), v(idx)))
    k('v_cmp_gt_u32 vcc, 41, %s' % v(idx))
    k('v_cndmask_b32 %s, %s, %s, vcc' % (v(go), v(big), v(go)))
    k('s_lshr_b32 s20, s3, 2')
    k('s_and_b32 s21, s3, 3')
    k('s_lshl_b32 s21, s21, 2')
    k('s_add_u32 s21, s21, s19')
    k('s_lshl_b32 s21, s21, 7')
    k('s_add_u32 s21, s20, s21')
    k('s_mul_i32 s21, s21, 642')
    k('s_and_b32 s23, s21, 15')
    k('s_andn2_b32 s21, s21, 15')
    k('s_add_u32 s22, s21, %d' % (64 * 642))
    k('s_lshl_b32 s25, s19, 11')
    k('s_mov_b32 s6, 0x%x' % (S * DF * 2))
    k('s_mov_b32 s7, 0x00020000')
    k('s_mov_b32 s10, 0x%x' % (S * DF * 2))
    k('s_mov_b32 s11, 0x00020000')
    for c in range(2):
        for j in range(2):
            k('s_add_u32 m0, s25, %d' % (c * 8192 + j * 1024))
            k('buffer_load_dwordx4 %s, %s, %s offen lds' % (v(go), s(4 + 4 * c, 4), s(21 + j)))
    k.stamp(1)
    for r in range(3):
        k('v_add_u32 %s, %d, v0' % (v(idx), 256 * r))
        k('v_subrev_u32 %s, 321, %s' % (v(tmp), v(idx)))
        k('v_cmp_gt_u32 vcc, 321, %s' % v(idx))
        k('v_cndmask_b32 %s, %s, %s, vcc' % (v(tmp), v(tmp), v(idx)))
        k('v_lshl_add_u32 %s, %s, 1, s23' % (v(lo + r), v(tmp)))
        k('v_lshlrev_b32 %s, 7, %s' % (v(so + r), v(tmp)))
        k('v_add_u32 %s, 0x%x, %s' % (v(tmp), 4096, v(lo + r)))
        k('v_cndmask_b32 %s, %s, %s, vcc' % (v(lo + r), v(tmp), v(lo + r)))
        k('v_add_u32 %s, 16, %s' % (v(tmp), v(so + r)))
        k('v_cndmask_b32 %s, %s, %s, vcc' % (v(so + r), v(tmp), v(so + r)))
        if r == 2:
            k('v_cmp_gt_u32 vcc, 642, %s' % v(idx))
            k('v_cndmask_b32 %s, %s, %s, vcc' % (v(so + r), v(big), v(so + r)))
    srd_ws(k, 12, 16, 'WB')
    R = va(12, 4)
    R2 = va(12, 4)
    k.barrier(vm=True)
    k.stamp(2)
    for r in range(3):
        for j in range(4):
            k('ds_read_u16 %s, %s offset:%d' % (v(R + 4 * r + j), v(lo + r), j * 1024))
            k('ds_read_u16 %s, %s offset:%d' % (v(R2 + 4 * r + j), v(lo + r), 8192 + j * 1024))
    for r in range(3):
        for j in range(4):
            k('v_lshl_or_b32 %s, %s, 16, %s' % (v(R + 4 * r + j), v(R2 + 4 * r + j), v(R + 4 * r + j)))
        k('buffer_store_dwordx4 %s, %s, s[12:15], s40 offen %s' % (v(R + 4 * r, 4), v(so + r), os.environ.get('PSC', '')))
    k.end()
```

```python
from common import *
from k1 import fl

def cs_frag(th):
    re = np.stack([np.cos(th), np.sin(th)], -1).reshape(64, 8)
    im = np.stack([-np.sin(th), np.cos(th)], -1).reshape(64, 8)
    return pack_frag(re), pack_frag(im)

def k2_tables():
    lane = np.arange(64)
    i, q = lane % 16, lane // 16
    jj = np.arange(4)
    words = []
    for tp in range(2):
        for t in range(2):
            f2 = 16 * tp + i[:, None]
            n2 = 16 * t + 4 * q[:, None] + jj[None, :]
            re, im = cs_frag(2 * np.pi * ((f2 * n2) % 32) / 32)
            words += [re, im]
    for w in range(4):
        f1 = 16 * w + i[:, None]
        for ks in range(4):
            n1 = 16 * ks + 4 * q[:, None] + jj[None, :]
            re, im = cs_frag(2 * np.pi * ((f1 * n1) % 64) / 64)
            words += [re, im]
        for t in range(2):
            n2 = 16 * t + 4 * q[:, None] + jj[None, :]
            th = 2 * np.pi * (n2 * f1) / 2048
            words += [f32_bits(np.cos(th)), f32_bits(np.sin(th))]
    return np.concatenate([w.ravel() for w in words])

K2_LDS = 8192 + 32 * 272

def twiddle(k, dr, di, tc, ts, t1, t2):
    for h in (0, 2):
        k('v_pk_mul_f32 %s, %s, %s' % (v(t1 + h, 2), v(di + h, 2), v(ts + h, 2)))
        k('v_pk_mul_f32 %s, %s, %s' % (v(t2 + h, 2), v(dr + h, 2), v(ts + h, 2)))
    for h in (0, 2):
        k('v_pk_fma_f32 %s, %s, %s, %s' % (v(dr + h, 2), v(dr + h, 2), v(tc + h, 2), v(t1 + h, 2)))
        k('v_pk_fma_f32 %s, %s, %s, %s neg_lo:[0,0,1] neg_hi:[0,0,1]' % (v(di + h, 2), v(di + h, 2), v(tc + h, 2), v(t2 + h, 2)))

def emit_col_role(k, wg0):
    va = Alloc(1, 168)
    k.stamp(0)
    k('s_load_dwordx2 s[16:17], s[0:1], %d' % KA['ws'])
    k('s_mov_b32 s20, s2')
    lane, ti, tq, l16, tmp, xo, wo = [va() for _ in range(7)]
    k('v_and_b32 %s, 63, v0' % v(lane))
    k('v_lshrrev_b32 %s, 6, v0' % v(ti))
    k('v_lshlrev_b32 %s, 4, %s' % (v(l16), v(lane)))
    k('v_readfirstlane_b32 s21, %s' % v(ti))
    k('v_and_b32 %s, 15, v0' % v(ti))
    k('v_lshrrev_b32 %s, 4, %s' % (v(tq), v(lane)))
    k('v_lshlrev_b32 %s, 4, %s' % (v(tmp), v(tq)))
    k('v_mov_b32 %s, %d' % (v(wo), BLK))
    k('v_mad_u32_u24 %s, %s, %s, %s' % (v(wo), v(wo), v(ti), v(tmp)))
    k('v_lshlrev_b32 %s, 1, %s' % (v(xo), v(wo)))
    k('v_sub_u32 %s, %s, %s' % (v(xo), v(xo), v(tmp)))
    k('s_lshl_b32 s22, s20, 7')
    k('s_lshr_b32 s23, s21, 1')
    k('s_lshl_b32 s23, s23, 5')
    k('s_and_b32 s24, s21, 1')
    k('s_add_u32 s23, s23, s24')
    k('s_mul_i32 s23, s23, %d' % BLK)
    k('s_add_u32 s23, s23, s22')
    k('s_add_u32 s24, s23, 64')
    k('s_mul_i32 s25, s21, %d' % (16 * BLK))
    k('s_add_u32 s25, s25, s22')
    k('s_lshl_b32 s27, s21, 11')
    srd_ws(k, 4, 16, 'XB')
    srd_ws(k, 12, 16, 'WB')
    k('s_mov_b32 m0, s27')
    k('buffer_load_dwordx4 %s, s[4:7], s23 offen lds' % v(xo))
    k('s_add_u32 m0, s27, 1024')
    tok = k.op('buffer_load_dwordx4 %s, s[4:7], s24 offen lds' % v(xo))
    B = va(32, 4)
    TW = va(16, 4)
    G = va(32, 4)
    Wv = va(8, 4)
    for t in range(2):
        k('buffer_load_dwordx4 %s, %s, s[12:15], s25 offen offset:%d' % (v(Wv + 4 * t, 4), v(wo), 64 * t))
    k.stamp(7)
    B1 = [B + 8 * ks for ks in range(4)]
    B2 = [B + 8 * ks + 4 for ks in range(4)]
    TC = [TW, TW + 8]
    TS = [TW + 4, TW + 12]
    Gr = lambda tp, t: G + 8 * (2 * tp + t)
    Gi = lambda tp, t: G + 8 * (2 * tp + t) + 4
    U = va(32, 4)
    an, cs, sn = U, U + 8, U + 12
    ff, fi, fn, m1, m2, m3 = [U + 16 + n for n in range(6)]
    k('s_lshl_b32 s28, s21, 4')
    k('v_add_u32 %s, s28, %s' % (v(ff), v(ti)))
    k('v_cvt_f32_u32 %s, %s' % (v(ff), v(ff)))
    k('v_cvt_f32_u32 %s, %s' % (v(fi), v(ti)))
    k('v_lshlrev_b32 %s, 2, %s' % (v(fn), v(tq)))
    k('v_cvt_f32_u32 %s, %s' % (v(fn), v(fn)))
    k('s_mov_b32 s29, 0x80008000')
    k('v_bfe_i32 %s, %s, 0, 1' % (v(m1), v(ti)))
    k('v_bfe_i32 %s, %s, 1, 1' % (v(m2), v(ti)))
    k('v_cmp_ne_u32 vcc, 0, %s' % v(m1))
    k('v_and_b32 %s, s29, %s' % (v(m1), v(m1)))
    k('v_and_b32 %s, s29, %s' % (v(m2), v(m2)))
    k('v_xor_b32 %s, %s, %s' % (v(m3), v(m1), v(m2)))
    def angles(n, f, mul):
        k('v_mul_f32 %s, %s, %s' % (v(f), fl(mul), v(f)))
        k('v_mul_f32 %s, %s, %s' % (v(an), v(f), v(fn)))
        for j in range(1, 4):
            k('v_add_f32 %s, %s, %s' % (v(an + j), v(an + j - 1), v(f)))
    def csfrag(re, im):
        for j in range(4):
            k('v_cos_f32 %s, %s' % (v(cs + j), v(an + j)))
            k('v_sin_f32 %s, %s' % (v(sn + j), v(an + j)))
        for j in range(4):
            k('v_cvt_pk_bf16_f32 %s, %s, %s' % (v(re + j), v(cs + j), v(sn + j)))
            k('v_cvt_pk_bf16_f32 %s, -%s, %s' % (v(im + j), v(sn + j), v(cs + j)))
    angles(4, ff, 1 / 64)
    csfrag(B1[0], B2[0])
    for j in range(4):
        k('v_cndmask_b32 %s, %s, %s, vcc' % (v(B1[1] + j), v(B1[0] + j), v(B2[0] + j)))
        k('v_cndmask_b32 %s, %s, %s, vcc' % (v(B2[1] + j), v(B2[0] + j), v(B1[0] + j)))
        k('v_xor_b32 %s, %s, %s' % (v(B1[2] + j), v(m1), v(B1[0] + j)))
        k('v_xor_b32 %s, %s, %s' % (v(B2[2] + j), v(m1), v(B2[0] + j)))
        k('v_xor_b32 %s, %s, %s' % (v(B1[3] + j), v(m3), v(B1[1] + j)))
        k('v_xor_b32 %s, %s, %s' % (v(B2[3] + j), v(m2), v(B2[1] + j)))
        k('v_xor_b32 %s, %s, %s' % (v(B1[1] + j), v(m2), v(B1[1] + j)))
        k('v_xor_b32 %s, %s, %s' % (v(B2[1] + j), v(m3), v(B2[1] + j)))
    angles(4, ff, 1 / 32)
    k('v_mul_f32 %s, 16.0, %s' % (v(ff), v(ff)))
    for j in range(4):
        k('v_add_f32 %s, %s, %s' % (v(an + 4 + j), v(an + j), v(ff)))
    for t in range(2):
        for j in range(4):
            k('v_cos_f32 %s, %s' % (v(TC[t] + j), v(an + 4 * t + j)))
            k('v_sin_f32 %s, %s' % (v(TS[t] + j), v(an + 4 * t + j)))
    angles(4, fi, 1 / 32)
    csfrag(Gr(0, 0), Gi(0, 0))
    for n in range(8):
        k('v_xor_b32 %s, %s, %s' % (v(Gr(0, 1) + n), v(m1), v(Gr(0, 0) + n)))
    for n in range(16):
        k(('v_xor_b32 %s, s29, %s' if n % 2 else 'v_mov_b32 %s, %s') % (v(Gr(1, 0) + n), v(Gr(0, 0) + n)))
    wa, ra, za = xo, wo, lane
    k('v_mul_u32_u24 %s, %d, %s' % (v(wa), 4 * 272, v(tq)))
    k('v_lshl_add_u32 %s, %s, 2, %s' % (v(wa), v(ti), v(wa)))
    k('s_lshl_b32 s32, s21, 6')
    k('s_add_u32 s32, s32, 8192')
    k('v_add_u32 %s, s32, %s' % (v(wa), v(wa)))
    k('v_mul_u32_u24 %s, 272, %s' % (v(ra), v(ti)))
    k('v_lshl_add_u32 %s, %s, 4, %s' % (v(ra), v(tq), v(ra)))
    k('v_lshlrev_b32 %s, 7, %s' % (v(za), v(ti)))
    k('v_lshl_add_u32 %s, %s, 4, %s' % (v(za), v(tq), v(za)))
    k('s_lshl_b32 s33, s20, 13')
    k('s_add_u32 s33, s33, s27')
    srd_ws(k, 4, 16, 'Z')
    k('s_mov_b32 s34, 0xffff0000')
    k.stamp(1)
    k.barrier(vm=tok)
    k.stamp(2)
    for f in range(8):
        k('ds_read_b128 %s, %s offset:%d' % (v(U + 4 * f, 4), v(l16), f * 1024))
    D1 = [[va(4, 4), va(4, 4)] for t in range(2)]
    def big(Dst, Af):
        for t in range(2):
            for ks in range(4):
                for c, Bc in enumerate((B1, B2)):
                    k('%s %s, %s, %s, %s' % (MFMA, v(Dst[t][c], 4), v(Af + 16 * t + 4 * ks, 4), v(Bc[ks], 4), v(Dst[t][c], 4) if ks else '0'))
    big(D1, U)
    k.stamp(3)
    WR, WI = U, U + 8
    for n in range(8):
        k('v_lshlrev_b32 %s, 16, %s' % (v(WR + n), v(Wv + n)))
        k('v_and_b32 %s, s34, %s' % (v(WI + n), v(Wv + n)))
    t1, t2 = va(4, 2), va(4, 2)
    Bf = [va(4, 4), va(4, 4)]
    for t in range(2):
        twiddle(k, D1[t][0], D1[t][1], TC[t], TS[t], t1, t2)
        for r in range(4):
            k('v_cvt_pk_bf16_f32 %s, %s, %s' % (v(Bf[t] + r), v(D1[t][0] + r), v(D1[t][1] + r)))
    D2 = [[U + 16 + 8 * t, U + 20 + 8 * t] for t in range(2)]
    def small(Dst, Bsrc):
        for tp in range(2):
            for t in range(2):
                k('%s %s, %s, %s, %s' % (MFMA, v(Dst[tp][0], 4), v(Gr(tp, t), 4), v(Bsrc[t], 4), v(Dst[tp][0], 4) if t else '0'))
                k('%s %s, %s, %s, %s' % (MFMA, v(Dst[tp][1], 4), v(Gi(tp, t), 4), v(Bsrc[t], 4), v(Dst[tp][1], 4) if t else '0'))
    small(D2, Bf)
    k.stamp(4)
    Bf2 = [Wv, Wv + 4]
    for t in range(2):
        xr, xi = D2[t]
        for h in (0, 2):
            k('v_pk_mul_f32 %s, %s, %s' % (v(t1 + h, 2), v(xi + h, 2), v(WI + 4 * t + h, 2)))
            k('v_pk_mul_f32 %s, %s, %s' % (v(t2 + h, 2), v(xi + h, 2), v(WR + 4 * t + h, 2)))
        for h in (0, 2):
            k('v_pk_fma_f32 %s, %s, %s, %s neg_lo:[0,1,1] neg_hi:[0,1,1]' % (v(xi + h, 2), v(xr + h, 2), v(WI + 4 * t + h, 2), v(t2 + h, 2)))
            k('v_pk_fma_f32 %s, %s, %s, %s neg_lo:[0,0,1] neg_hi:[0,0,1]' % (v(xr + h, 2), v(xr + h, 2), v(WR + 4 * t + h, 2), v(t1 + h, 2)))
        for r in range(4):
            k('v_cvt_pk_bf16_f32 %s, %s, %s' % (v(Bf2[t] + r), v(xr + r), v(xi + r)))
    small(D1, Bf2)
    k.stamp(5)
    for t in range(2):
        twiddle(k, D1[t][0], D1[t][1], TC[t], TS[t], t1, t2)
        for r in range(4):
            k('v_cvt_pk_bf16_f32 %s, %s, %s' % (v(Bf[t] + r), v(D1[t][0] + r), v(D1[t][1] + r)))
            k('ds_write_b32 %s, %s offset:%d' % (v(wa), v(Bf[t] + r), (16 * t + r) * 272))
    k.barrier()
    k.stamp(6)
    for t in range(2):
        for ks in range(4):
            k('ds_read_b128 %s, %s offset:%d' % (v(G + 16 * t + 4 * ks, 4), v(ra), 8192 + t * 4352 + ks * 64))
    big(D2, G)
    for t in range(2):
        for r in range(4):
            k('v_cvt_pk_bf16_f32 %s, %s, %s' % (v(Bf2[t] + r), v(D2[t][0] + r), v(D2[t][1] + r)))
        k('buffer_store_dwordx4 %s, %s, s[4:7], s33 offen offset:%d' % (v(Bf2[t], 4), v(za), t * 64))
    k.end()
```

```python
from common import *

PREP = dict(
    w1=('w1', 'W1F', 640, 640, 20, 20, 10, 5, 1, 5, 'CS1'),
    w2=('w2', 'W2F', 640, 640, 20, 20, 5, 5, 1, 5, False),
    w3=('w3', 'W3F', 1728, 640, 54, 20, 7, 7, 1, 5, 'CS3'),
    w4=('w4', 'W4F', 640, 1728, 20, 56, 5, 5, 2, 7, False),
)

def prep_count(name):
    p = PREP[name]
    return p[4] * p[9]

def tile_cols(name):
    ka, reg, NC, NR, NU, NKp, NT, P, KPW, NG, cs = PREP[name]
    out = {}
    i = np.arange(16)
    hp = P // 2
    for u in range(NU):
        t, r = divmod(u, P)
        if name == 'w1':
            halves = r == 4
            d = [(t, 2 * r), (t, 2 * r + 1)]
        elif r < hp:
            halves, d = False, [(2 * t, 2 * r), (2 * t, 2 * r + 1)]
        elif r == hp:
            halves, d = True, [(2 * t, NT - 1), (2 * t + 1, NT - 1)]
        else:
            halves, d = False, [(2 * t + 1, 2 * (r - hp - 1)), (2 * t + 1, 2 * (r - hp - 1) + 1)]
        for h in range(2):
            out[d[h]] = 32 * u + (16 * h + i if halves else 2 * i + h)
    return out

PSC = os.environ.get('PSC', '')

def emit_prep(name):
    ka, reg, NC, NR, NU, NKp, NT, P, KPW, NG, cs = PREP[name]
    hp = P // 2
    pitch = NC * 2
    cs = False
    def fn(k, wg0):
        va = Alloc(1, 128)
        k.stamp(0)
        k('s_load_dwordx2 s[4:5], s[0:1], %d' % KA[ka])
        k('s_load_dwordx2 s[16:17], s[0:1], %d' % KA['ws'])
        k('s_sub_u32 s3, s2, %d' % wg0)
        ti, tq, lane, lo, wa, ra = [va() for _ in range(6)]
        k('v_lshrrev_b32 %s, 6, v0' % v(ti))
        k('v_and_b32 %s, 63, v0' % v(lane))
        k('v_readfirstlane_b32 s20, %s' % v(ti))
        k('v_lshrrev_b32 %s, 2, %s' % (v(lo), v(lane)))
        k('v_mul_u32_u24 %s, %d, %s' % (v(lo), pitch, v(lo)))
        k('v_and_b32 %s, 3, v0' % v(ti))
        k('v_lshl_add_u32 %s, %s, 4, %s' % (v(lo), v(ti), v(lo)))
        k('s_mov_b32 s19, s20')
        done = k.newlabel('pdone')
        k('s_mul_i32 s22, s3, %d' % (65536 // NU + 1))
        k('s_lshr_b32 s22, s22, 16')
        k('s_mul_i32 s21, s22, %d' % NU)
        k('s_sub_u32 s3, s3, s21')
        k('s_lshl_b32 s22, s22, 2')
        k('s_add_u32 s19, s19, s22')
        k('s_mul_i32 s21, s19, %d' % KPW)
        k('s_mul_i32 s24, s21, %d' % (32 * pitch))
        k('s_lshl_b32 s25, s3, 6')
        k('s_add_u32 s24, s24, s25')
        k('s_mov_b32 s6, 0x%x' % (NR * pitch))
        k('s_mov_b32 s7, 0x00020000')
        R = va(8 * KPW, 4)
        for n in range(2 * KPW):
            k('buffer_load_dwordx4 %s, %s, s[4:7], s24 offen' % (v(R + 4 * n, 4), v(lo)))
            if n + 1 < 2 * KPW:
                k('s_add_u32 s24, s24, %d' % (16 * pitch))
        k.stamp(1)
        k('s_mul_i32 s22, s3, %d' % (65536 // P + 1))
        k('s_lshr_b32 s22, s22, 16')
        k('s_mul_i32 s23, s22, %d' % P)
        k('s_sub_u32 s23, s3, s23')
        CBS = NKp * NT
        if name == 'w1':
            for (d0, cbs) in ((26, CBS), (28, NT)):
                k('s_mul_i32 %s, s22, %d' % (s(d0), cbs))
                k('s_lshl_b32 s30, s23, 1')
                k('s_add_u32 %s, %s, s30' % (s(d0), s(d0)))
                k('s_add_u32 %s, %s, 1' % (s(d0 + 1), s(d0)))
            hv = 4
        else:
            for (d0, cbs) in ((26, CBS), (28, NT)) if cs else ((26, CBS),):
                k('s_mul_i32 %s, s22, %d' % (s(d0), 2 * cbs))
                k('s_lshl_b32 s30, s23, 1')
                k('s_add_u32 %s, %s, s30' % (s(d0), s(d0)))
                k('s_cmp_gt_u32 s23, %d' % hp)
                k('s_cselect_b32 s30, %d, 0' % (cbs - 2 * hp - 2))
                k('s_add_u32 %s, %s, s30' % (s(d0), s(d0)))
                k('s_cmp_eq_u32 s23, %d' % hp)
                k('s_cselect_b32 s30, %d, 1' % cbs)
                k('s_add_u32 %s, %s, s30' % (s(d0 + 1), s(d0)))
            hv = hp
        k('s_mul_i32 s30, s21, %d' % NT)
        k('s_add_u32 s26, s26, s30')
        k('s_add_u32 s27, s27, s30')
        k('s_lshl_b32 s26, s26, 10')
        k('s_lshl_b32 s27, s27, 10')
        srd_ws(k, 12, 16, reg)
        k('s_cmp_eq_u32 s23, %d' % hv)
        k('s_mov_b32 s32, 0x05040100')
        k('s_mov_b32 s33, 0x07060302')
        k('s_cselect_b32 s34, 3, 4')
        k('s_cselect_b32 s35, 32, 8')
        k('v_lshlrev_b32 %s, 4, %s' % (v(lane), v(lane)))
        k('s_lshl_b32 s36, s20, 12')
        k('v_add_u32 %s, s36, %s' % (v(wa), v(lane)))
        k('v_bfe_u32 %s, v0, 4, 2' % v(tq))
        k('v_bfe_u32 %s, v0, 2, 2' % v(ra))
        k('v_lshl_add_u32 %s, %s, 3, %s' % (v(ra), v(tq), v(ra)))
        k('v_lshlrev_b32 %s, 6, %s' % (v(ra), v(ra)))
        k('v_lshlrev_b32 %s, s34, %s' % (v(ti), v(ti)))
        k('v_add3_u32 %s, %s, %s, s36' % (v(ra), v(ra), v(ti)))
        rb = lo
        k('v_add_u32 %s, s35, %s' % (v(rb), v(ra)))
        O = va(8 * KPW, 4)
        Tm = va(8, 4)
        ones, acc = va(4, 4), va(8, 4)
        if cs:
            for n in range(4):
                k('v_mov_b32 %s, 0x3f803f80' % v(ones + n))
        lhal, ljoin = k.newlabel('hal'), k.newlabel('join')
        def lds(ks, src):
            b = (ks % 2) * 2048
            for h in range(2):
                k('ds_write_b128 %s, %s offset:%d' % (v(wa), v(src + 4 * h, 4), b + 1024 * h))
            for h in range(2):
                for m in range(2):
                    k('ds_read_b64_tr_b16 %s, %s offset:%d' % (v(O + 8 * ks + 4 * h + 2 * m, 2), v(rb if h else ra), b + 256 * m))
        def stores(ks):
            for h in range(2):
                k('buffer_store_dwordx4 %s, %s, s[12:15], %s offen %s' % (v(O + 8 * ks + 4 * h, 4), v(lane), s(26 + h), PSC))
                if cs:
                    k('%s %s, %s, %s, %s' % (MFMA, v(acc + 4 * h, 4), v(O + 8 * ks + 4 * h, 4), v(ones, 4), v(acc + 4 * h, 4) if ks else '0'))
                if ks + 1 < KPW:
                    k('s_add_u32 %s, %s, %d' % (s(26 + h), s(26 + h), NT * 1024))
        k('s_cmp_eq_u32 s23, %d' % hv)
        k('s_cbranch_scc1 %s' % lhal)
        st = k.save()
        for ks in range(KPW):
            for h in range(2):
                b = R + 8 * ks + 4 * h
                k('v_perm_b32 %s, %s, %s, s32' % (v(Tm + 4 * h), v(b + 1), v(b)))
                k('v_perm_b32 %s, %s, %s, s32' % (v(Tm + 4 * h + 1), v(b + 3), v(b + 2)))
                k('v_perm_b32 %s, %s, %s, s33' % (v(Tm + 4 * h + 2), v(b + 1), v(b)))
                k('v_perm_b32 %s, %s, %s, s33' % (v(Tm + 4 * h + 3), v(b + 3), v(b + 2)))
            lds(ks, Tm)
            if ks:
                stores(ks - 1)
        stores(KPW - 1)
        if cs:
            k.wait_lg()
            k('s_branch %s' % ljoin)
        else:
            k.end()
        k.label(lhal)
        k.restore(st)
        for ks in range(KPW):
            lds(ks, R + 8 * ks)
            if ks:
                stores(ks - 1)
        stores(KPW - 1)
        if cs:
            k.wait_lg()
            k.label(ljoin)
            k('s_nop 7')
            k('s_nop 7')
            k('ds_write_b128 %s, %s' % (v(wa), v(acc, 4)))
            k('ds_write_b128 %s, %s offset:1024' % (v(wa), v(acc + 4, 4)))
            k.barrier()
            lend = k.newlabel('pe')
            k('s_cmp_gt_u32 s20, 1')
            k('s_cbranch_scc1 %s' % lend)
            k('s_lshl_b32 s30, s20, 10')
            k('v_add_u32 %s, s30, %s' % (v(lo), v(lane)))
            for w in range(4):
                k('ds_read_b128 %s, %s offset:%d' % (v(R + 4 * w, 4), v(lo), 4096 * w))
            srd_ws(k, 12, 16, cs)
            k('s_cmp_eq_u32 s20, 0')
            k('s_cselect_b32 s28, s28, s29')
            k('s_lshl_b32 s28, s28, 6')
            k('v_lshlrev_b32 %s, 4, %s' % (v(tq), v(tq)))
            k('v_mov_b32 %s, 0x40000000' % v(lo))
            k('v_and_b32 %s, 15, v0' % v(ti))
            k('v_cmp_eq_u32 vcc, 0, %s' % v(ti))
            k('v_cndmask_b32 %s, %s, %s, vcc' % (v(tq), v(lo), v(tq)))
            for n in range(4):
                k('v_add_f32 %s, %s, %s' % (v(R + n), v(R + n), v(R + 4 + n)))
                k('v_add_f32 %s, %s, %s' % (v(R + 8 + n), v(R + 8 + n), v(R + 12 + n)))
                k('v_add_f32 %s, %s, %s' % (v(R + n), v(R + n), v(R + 8 + n)))
            k('buffer_store_dwordx4 %s, %s, s[12:15], s28 offen' % (v(R, 4), v(tq)))
            k.label(lend)
        k.label(done)
        k.end()
    return fn


def cs_count(name):
    return {'w1': 40, 'w3': 112}[name]

def emit_cs(name):
    ka, reg, NC, NR, NU, NKp, NT, P, KPW, NG, cs = PREP[name]
    def fn(k, wg0):
        k.stamp(0)
        k('s_load_dwordx2 s[16:17], s[0:1], %d' % KA['ws'])
        k('s_sub_u32 s3, s2, %d' % wg0)
        k('v_lshrrev_b32 v1, 6, v0')
        k('v_and_b32 v2, 63, v0')
        k('v_readfirstlane_b32 s20, v1')
        k('v_lshlrev_b32 v2, 4, v2')
        k('s_mul_i32 s21, s3, %d' % (65536 // NT + 1))
        k('s_lshr_b32 s21, s21, 16')
        k('s_mul_i32 s21, s21, %d' % ((NKp - 1) * NT))
        k('s_add_u32 s21, s21, s3')
        k('s_mul_i32 s22, s20, %d' % (5 * NT))
        k('s_add_u32 s21, s21, s22')
        k('s_lshl_b32 s21, s21, 10')
        srd_ws(k, 4, 16, reg)
        for n in range(5):
            k('buffer_load_dwordx4 %s, v2, s[4:7], s21 offen' % v(8 + 4 * n, 4))
            if n < 4:
                k('s_add_u32 s21, s21, %d' % (NT * 1024))
        for n in range(4):
            k('v_mov_b32 %s, 0x3f803f80' % v(4 + n))
        k('v_lshlrev_b32 v1, 4, v0')
        srd_ws(k, 12, 16, cs)
        for n in range(5):
            k('%s v[28:31], %s, v[4:7], %s' % (MFMA, v(8 + 4 * n, 4), 'v[28:31]' if n else '0'))
        k('ds_write_b128 v1, v[28:31]')
        k.barrier()
        lend = k.newlabel('pe')
        k('s_cmp_gt_u32 s20, 0')
        k('s_cbranch_scc1 %s' % lend)
        for w in range(4):
            k('ds_read_b128 %s, v2 offset:%d' % (v(8 + 4 * w, 4), 1024 * w))
        k('s_lshl_b32 s28, s3, 6')
        k('v_and_b32 v3, 15, v0')
        k('v_mov_b32 v1, 0x40000000')
        k('v_cmp_eq_u32 vcc, 0, v3')
        k('v_cndmask_b32 v1, v1, v0, vcc')
        for n in range(4):
            k('v_add_f32 %s, %s, %s' % (v(8 + n), v(8 + n), v(12 + n)))
            k('v_add_f32 %s, %s, %s' % (v(16 + n), v(16 + n), v(20 + n)))
            k('v_add_f32 %s, %s, %s' % (v(8 + n), v(8 + n), v(16 + n)))
        k('buffer_store_dwordx4 v[8:11], v1, s[12:15], s28 offen')
        k.label(lend)
        k.end()
    return fn
```

```python
from common import *
from k1 import rnd_bf16
import os

G1 = -2 * np.log2(np.e) * np.sqrt(2 / np.pi)
G2 = G1 * 0.044715

def qsum(k, x, t):
    k('v_mov_b32 %s, %s' % (v(t), v(x)))
    k('v_permlane32_swap_b32 %s, %s' % (v(x), v(t)))
    k('v_add_f32 %s, %s, %s' % (v(x), v(x), v(t)))
    k('v_mov_b32 %s, %s' % (v(t), v(x)))
    k('v_permlane16_swap_b32 %s, %s' % (v(x), v(t)))
    k('v_add_f32 %s, %s, %s' % (v(x), v(x), v(t)))

def weave(k, main, fill):
    n, m = len(main), len(fill)
    j = 0
    for i, op in enumerate(main):
        k(op)
        while j < m and (j + 1) * n <= (i + 1) * m + (n - 1) - (n - 1) * 0 and j * n <= i * m:
            f = fill[j]
            f() if callable(f) else k(f)
            j += 1
    while j < m:
        f = fill[j]
        f() if callable(f) else k(f)
        j += 1

def tile_ids(k, rbits):
    k('s_bfe_u32 s21, s2, 0x20001')
    k('s_lshl_b32 s21, s21, %d' % rbits)
    k('s_bfe_u32 s23, s2, 0x%x' % ((rbits << 16) | 3))
    k('s_add_u32 s21, s21, s23')
    k('s_and_b32 s22, s2, 1')
    k('s_lshl_b32 s22, s22, %d' % (5 - rbits))
    k('s_lshr_b32 s23, s2, %d' % (3 + rbits))
    k('s_add_u32 s22, s22, s23')

def col_geom(k, NT):
    NP = NT // 2
    k('s_lshr_b32 s27, s22, 1')
    k('s_mul_i32 s27, s27, %d' % NT)
    k('s_add_u32 s28, s27, %d' % NP)
    k('s_and_b32 s29, s22, 1')
    k('s_mul_i32 s30, s29, %d' % (NP + 1))
    k('s_add_u32 s27, s27, s30')
    k('s_lshl_b32 s29, s29, 5')

def half_addr(k, d, ti, tq, tmp):
    k('v_lshrrev_b32 %s, 1, %s' % (v(tmp), v(tq)))
    k('v_lshlrev_b32 %s, 4, %s' % (v(d), v(ti)))
    k('v_lshl_add_u32 %s, %s, 8, %s' % (v(d), v(tmp), v(d)))
    k('v_and_b32 %s, 1, %s' % (v(tmp), v(tq)))
    k('v_lshl_add_u32 %s, %s, 3, %s' % (v(d), v(tmp), v(d)))

EARLY = int(os.environ.get('EARLY', 0))
A_RING = {'k5': 104, 'k7': int(os.environ.get('RING7', 160))}
def gemm_lds(kind):
    return 160 * 1024 if kind == 'k6' else A_RING[kind] * 1024

def emit_gemmA(kind):
    NK, NKp, AREG, AROWS, AOFF, WREG = {
        'k5': (20, 20, 'HH', HHR, 2, 'W2F'),
        'k7': (54, 56, 'G', S, 0, 'W4F'),
    }[kind]
    NT = 5
    RING = A_RING[kind]
    NS = NK // 2
    NR = (NK * NT + 7) // 8
    PD = int(os.environ.get('PD' + kind[1], 4))
    BS = 2
    def fn(k, wg0):
        va = Alloc(1)
        k.stamp(0)
        k('s_load_dwordx2 s[16:17], s[0:1], %d' % KA['ws'])
        if kind == 'k7':
            k('s_load_dwordx2 s[40:41], s[0:1], %d' % KA['out'])
        ti, tq, l16, ao, tmp = [va() for _ in range(5)]
        k('v_lshrrev_b32 %s, 6, v0' % v(ti))
        k('v_and_b32 %s, 63, v0' % v(l16))
        k('v_readfirstlane_b32 s20, %s' % v(ti))
        k('v_and_b32 %s, 15, v0' % v(ti))
        k('v_lshrrev_b32 %s, 4, %s' % (v(tq), v(l16)))
        k('v_lshlrev_b32 %s, 4, %s' % (v(l16), v(l16)))
        k('v_lshlrev_b32 %s, 4, %s' % (v(ao), v(tq)))
        k('v_lshl_add_u32 %s, %s, 6, %s' % (v(ao), v(ti), v(ao)))
        tile_ids(k, 3)
        k('s_and_b32 s18, s20, 3')
        k('s_lshr_b32 s19, s20, 2')
        k('s_lshl_b32 s23, s21, 2')
        k('s_add_u32 s23, s23, s18')
        k('s_lshl_b32 s23, s23, 10')
        k('s_mul_i32 s24, s19, %d' % (AROWS * 64))
        k('s_add_u32 s24, s24, s23')
        if AOFF:
            k('s_add_u32 s24, s24, %d' % (AOFF * 64))
        k('s_mul_i32 s25, s22, %d' % (NKp * NT))
        k('s_add_u32 s25, s25, s20')
        k('s_lshl_b32 s25, s25, 10')
        k('s_lshl_b32 s26, s20, 10')
        srd_ws(k, 4, 16, WREG)
        srd_ws(k, 8, 16, AREG)
        rtok = {}
        def dma(r):
            def f():
                k('s_add_u32 m0, s26, %d' % ((8 * r % RING) * 1024))
                rtok[r] = k.op('buffer_load_dwordx4 %s, s[4:7], s25 offen lds' % v(l16))
                if r + 1 < NR:
                    k('s_add_u32 s25, s25, 8192')
            return f
        def act(j):
            def f():
                k('buffer_load_dwordx4 %s, %s, s[8:11], s24 offen' % (a(4 * j, 4), v(l16 if kind == 'k7' else ao)))
                if j + 1 < NS:
                    k('s_add_u32 s24, s24, %d' % (2 * AROWS * 64))
            return f
        loads = []
        r = 0
        for j in range(NS):
            while r < NR and 8 * r < 10 * (j + 1):
                loads.append((j, dma(r), r))
                r += 1
            loads.append((j, act(j), None))
        lp = [0]
        def take(upto, freed):
            out = []
            while lp[0] < len(loads):
                j, f, r = loads[lp[0]]
                if j > upto or (r is not None and 8 * r + 8 - RING > freed):
                    break
                out.append(f)
                lp[0] += 1
            return out
        for f in take(1, 0):
            f()
        k.stamp(1)
        col_geom(k, NT)
        ho = va()
        k('v_lshlrev_b32 %s, 3, %s' % (v(ho), v(tq)))
        k('v_lshl_add_u32 %s, %s, 6, %s' % (v(ho), v(ti), v(ho)))
        hn = va()
        half_addr(k, hn, ti, tq, tmp)
        k('s_add_u32 s27, s27, s19')
        k('s_lshl_b32 s32, s27, 17')
        k('s_add_u32 s32, s32, s23')
        k('s_lshl_b32 s35, s28, 17')
        k('s_add_u32 s35, s35, s23')
        k('s_add_u32 s35, s35, s29')
        k('s_lshl_b32 s33, s19, 30')
        k('s_add_u32 s35, s35, s33')
        k('s_mul_i32 s34, s29, 15')
        k('s_add_u32 s34, s34, s35')
        k('s_mov_b32 s36, 0xffff0000')
        acc = [va(4, 4) for t in range(NT)]
        WB = [[va(4, 4) for t in range(NT)] for b in range(2)]
        def ld_tile(R, srd, new=False):
            k('buffer_load_dwordx4 %s, %s, %s, s32 offen' % (v(R, 4), v(l16 if new else ao), s(srd, 4)))
            k('buffer_load_dwordx2 %s, %s, %s, %s offen' % (v(R + 4, 2), v(hn if new else ho), s(srd, 4), 's34' if new else 's35'))
        R1, R2 = va(6, 4), va(6, 4)
        if kind == 'k5':
            srd_ws(k, 12, 16, 'H')
            ld_tile(R1, 12, True)
            srd_ws(k, 44, 16, 'ST0')
            k('s_lshr_b32 s37, s23, 3')
            k('v_lshlrev_b32 %s, 3, %s' % (v(tmp), v(ti)))
            k('buffer_load_dwordx2 %s, %s, s[44:47], s37 offen' % (v(R2, 2), v(tmp)))
        else:
            srd_ws(k, 12, 16, 'H')
            ld_tile(R1, 12, True)
            srd_ws(k, 44, 16, 'X1')
            ld_tile(R2, 44, True)
        for f in take(PD - 1, 0):
            f()
        k.stamp(2)
        NW = (min(RING, NK * NT) + 59) // 60
        lb = [[va() for n in range(3)] for w in range(NW)]
        k('s_mul_i32 s37, s19, 7168')
        k('s_mul_i32 s38, s19, 3072')
        k('s_add_u32 s38, s38, 2048')
        k('s_mul_i32 s39, s19, 5120')
        k('s_add_u32 s39, s39, 4096')
        for n in range(3):
            k('v_add_u32 %s, %s, %s' % (v(lb[0][n]), s(37 + n), v(l16)))
            for w in range(1, NW):
                k('v_add_u32 %s, 0x%x, %s' % (v(lb[w][n]), w * 60 * 1024, v(lb[0][n])))
        def reads(j):
            f0 = (10 * j) % RING
            w, off = f0 // 60, (f0 % 60) * 1024
            return ['ds_read_b128 %s, %s offset:%d' % (v(WB[j % 2][t], 4), v(lb[w][t // 2]), off + (t % 2) * 1024) for t in (2, 3, 4, 0, 1)]
        def mfmas(j):
            return ['%s %s, %s, %s, %s' % (MFMA, v(acc[t], 4), v(WB[j % 2][t], 4), a(4 * j, 4), v(acc[t], 4) if j else '0') for t in (2, 3, 4, 0, 1)]
        freed = 0
        for j in range(NS + 1):
            fill = []
            if j < NS:
                if j % BS == 0:
                    lastr = min(NR, (10 * (j + BS) + 7) // 8) - 1
                    k.barrier(vm=rtok[lastr], lg=False)
                    if j // BS < 8: k.stamp(3 + j // BS)
                    freed = max(0, 10 * (j - 1))
                fill = reads(j)
                if EARLY and j % BS == 0:
                    for f in take(j + PD + BS - 1, freed):
                        f()
                ld = take(j + PD, freed)
                f2 = []
                for n, x in enumerate(fill):
                    f2.append(x)
                    if n in (1, 3, 4) and ld:
                        f2.append(ld.pop(0))
                fill = f2 + ld
            if j:
                weave(k, mfmas(j - 1), fill)
            else:
                for x in fill:
                    x() if callable(x) else k(x)
        assert lp[0] == len(loads)
        k.stamp(12)
        xo = (10 * (NS - 2 * BS) % RING) * 1024
        k('s_mul_i32 s37, s20, 3072')
        k('s_xor_b32 s38, s20, 4')
        k('s_mul_i32 s38, s38, 3072')
        jl = (NS - 1) // BS * BS
        base = (10 * (jl - 4)) % RING
        assert base + 24 <= RING and jl - 4 >= 0
        k('s_add_u32 s37, s37, %d' % (base * 1024))
        k('s_add_u32 s38, s38, %d' % (base * 1024))
        k('v_add_u32 %s, s37, %s' % (v(lb[0][0]), v(l16)))
        k('v_add_u32 %s, s38, %s' % (v(lb[0][1]), v(l16)))
        for n in range(3):
            k('ds_write_b128 %s, %s offset:%d' % (v(lb[0][0]), v(acc[2 + n], 4), 1024 * n))
        def elems():
            for r in range(4):
                for h in range(2):
                    yield acc[h] + r, r, h
            for r in range(4):
                yield acc[4] + r, 4 + r // 2, r % 2
        T = WB[NS % 2][0]
        for n, (ar, d, h) in enumerate(elems()):
            k(('v_and_b32 %s, s36, %s' if h else 'v_lshlrev_b32 %s, 16, %s') % (v(T + n), v(R1 + d)))
            if kind == 'k7':
                k(('v_and_b32 %s, s36, %s' if h else 'v_lshlrev_b32 %s, 16, %s') % (v(tmp), v(R2 + d)))
                k('v_add_f32 %s, %s, %s' % (v(T + n), v(T + n), v(tmp)))
            else:
                k('v_fma_f32 %s, %s, %s, %s' % (v(T + n), v(T + n), v(R2), v(R2 + 1)))
        for n, (ar, d, h) in enumerate(elems()):
            k('v_add_f32 %s, %s, %s' % (v(ar), v(ar), v(T + n)))
        if kind == 'k5':
            srd_ws(k, 12, 16, 'X1')
            ao, ho = l16, hn
            k('s_mov_b32 s35, s34')
            srd_ws(k, 8, 16, 'ST1')
            k('s_lshl_b32 s37, s22, 1')
            k('s_add_u32 s37, s37, s19')
            k('s_lshl_b32 s37, s37, 3')
            k('s_lshl_b32 s38, s23, 1')
            k('s_add_u32 s37, s37, s38')
            k('s_mov_b32 s38, 0x3f803f80')
            k('s_sub_u32 s39, s19, 1')
            k('v_lshlrev_b32 %s, 28, %s' % (v(tq), v(tq)))
            k('v_lshl_add_u32 %s, %s, 7, %s' % (v(tq), v(ti), v(tq)))
        else:
            srd_from(k, 12, 40, 0, S * D * 2)
            k('v_mul_u32_u24 %s, 1280, %s' % (v(tmp), v(ti)))
            k('v_lshl_add_u32 %s, %s, 4, %s' % (v(ao), v(tq), v(tmp)))
            k('v_lshl_add_u32 %s, %s, 3, %s' % (v(ho), v(tq), v(tmp)))
            k('s_mul_i32 s37, s23, 20')
            k('s_lshl_b32 s32, s27, 6')
            k('s_add_u32 s32, s32, s37')
            k('s_lshl_b32 s35, s28, 6')
            k('s_add_u32 s35, s35, s37')
            k('s_add_u32 s35, s35, s29')
            k('s_add_u32 s35, s35, s33')
        k.barrier()
        k.stamp(13)
        X = WB[(NS + 1) % 2][0]
        for n in range(3):
            k('ds_read_b128 %s, %s offset:%d' % (v(X + 4 * n, 4), v(lb[0][1]), 1024 * n))
        for n, t in enumerate((0, 1, 4)):
            for r in range(4):
                k('v_add_f32 %s, %s, %s' % (v(acc[t] + r), v(acc[t] + r), v(X + 4 * n + r)))
            if n == 1:
                for r in range(4):
                    k('v_cvt_pk_bf16_f32 %s, %s, %s' % (v(R1 + r), v(acc[0] + r), v(acc[1] + r)))
                k('buffer_store_dwordx4 %s, %s, s[12:15], s32 offen' % (v(R1, 4), v(ao)))
        for r in range(2):
            k('v_cvt_pk_bf16_f32 %s, %s, %s' % (v(R1 + 4 + r), v(acc[4] + 2 * r), v(acc[4] + 2 * r + 1)))
        k('buffer_store_dwordx2 %s, %s, s[12:15], s35 offen' % (v(R1 + 4, 2), v(ho)))
        if kind == 'k5':
            sm = R2
            for r in range(2):
                k('v_and_b32 %s, s39, %s' % (v(R2 + 4 + r), v(R1 + 4 + r)))
            src = [R1, R1 + 1, R1 + 2, R1 + 3, R2 + 4, R2 + 5]
            for d, x in enumerate(src):
                k('v_dot2_f32_bf16 %s, %s, s38, %s' % (v(sm), v(x), v(sm) if d else '0'))
                k('v_dot2_f32_bf16 %s, %s, %s, %s' % (v(sm + 1), v(x), v(x), v(sm + 1) if d else '0'))
            qsum(k, sm, R2 + 2)
            qsum(k, sm + 1, R2 + 3)
            k('buffer_store_dwordx2 %s, %s, s[8:11], s37 offen' % (v(sm, 2), v(tq)))
        k.end()
    return fn


def emit_gemmB(k, wg0):
    NK, NT = 20, 7
    RK = 10
    PD = int(os.environ.get('PD6', 5))
    BS = 2
    va = Alloc(1)
    k.stamp(0)
    k('s_load_dwordx2 s[16:17], s[0:1], %d' % KA['ws'])
    ti, tq, l16, ao, tmp = [va() for _ in range(5)]
    k('v_lshrrev_b32 %s, 6, v0' % v(ti))
    k('v_and_b32 %s, 63, v0' % v(l16))
    k('v_readfirstlane_b32 s20, %s' % v(ti))
    k('v_and_b32 %s, 15, v0' % v(ti))
    k('v_lshrrev_b32 %s, 4, %s' % (v(tq), v(l16)))
    k('v_lshlrev_b32 %s, 4, %s' % (v(l16), v(l16)))
    k('v_lshlrev_b32 %s, 4, %s' % (v(ao), v(tq)))
    k('v_lshl_add_u32 %s, %s, 6, %s' % (v(ao), v(ti), v(ao)))
    tile_ids(k, 2)
    k('s_lshl_b32 s26, s20, 10')
    k('s_lshl_b32 s24, s21, 13')
    k('s_add_u32 s24, s24, s26')
    k('s_mul_i32 s25, s22, %d' % (NK * NT * 1024))
    k('s_add_u32 s25, s25, s26')
    k('s_cmp_eq_u32 s20, 7')
    k('s_cselect_b32 s25, 0x40000000, s25')
    srd_ws(k, 4, 16, 'W3F')
    srd_ws(k, 8, 16, 'X1')
    tok = {}
    def dma(ks, wh):
        def f():
            k('s_add_u32 m0, s26, %d' % ((ks % RK) * 16384 + wh * 8192))
            if wh:
                tok[ks] = k.op('buffer_load_dwordx4 %s, s[4:7], s25 offen lds' % v(l16))
                k('s_add_u32 s25, s25, %d' % (NT * 1024))
            else:
                k('buffer_load_dwordx4 %s, s[8:11], s24 offen lds' % v(l16))
                k('s_add_u32 s24, s24, %d' % (S * 64))
        return f
    for ks in range(2):
        dma(ks, 0)(); dma(ks, 1)()
    k.stamp(1)
    k('s_and_b32 s18, s20, 3')
    k('s_lshl_b32 s23, s21, 2')
    k('s_add_u32 s23, s23, s18')
    k('s_lshl_b32 s23, s23, 11')
    col_geom(k, NT)
    ho, so = va(), va()
    half_addr(k, ho, ti, tq, tmp)
    k('v_lshlrev_b32 %s, 1, %s' % (v(so), v(ao)))
    k('v_lshlrev_b32 %s, 4, %s' % (v(tmp), v(tq)))
    ST = va(16, 4)
    acc = [[va(4, 4) for t in range(4)] for m in range(2)]
    CS = va(16, 4)
    for ks in range(2, 4):
        dma(ks, 0)(); dma(ks, 1)()
    srd_ws(k, 12, 16, 'ST1')
    k('s_lshl_b32 s37, s23, 1')
    for m in range(2):
        for h in range(2):
            k('buffer_load_dwordx4 %s, %s, s[12:15], s37 offen offset:%d' % (v(ST + 8 * m + 4 * h, 4), v(so), m * 2048 + h * 16))
    srd_ws(k, 44, 16, 'CS3')
    k('s_mul_i32 s37, s22, %d' % (NT * 64))
    k('s_lshr_b32 s19, s20, 2')
    k('s_lshl_b32 s38, s19, 8')
    k('s_add_u32 s37, s37, s38')
    for t in range(4):
        k('buffer_load_dwordx4 %s, %s, s[44:47], s37 offen offset:%d' % (v(CS + 4 * t, 4), v(tmp), t * 64))
    for ks in range(4, PD):
        dma(ks, 0)(); dma(ks, 1)()
    k.stamp(2)
    k('s_lshl_b32 s38, s19, 1')
    k('s_add_u32 s27, s27, s38')
    k('s_lshl_b32 s32, s27, 17')
    k('s_add_u32 s32, s32, s23')
    k('s_add_u32 s33, s32, %d' % (1 << 17))
    k('s_lshl_b32 s35, s28, 17')
    k('s_add_u32 s35, s35, s23')
    k('s_lshl_b32 s29, s29, 4')
    k('s_add_u32 s35, s35, s29')
    srd_ws(k, 12, 16, 'G')
    la = [va() for w in range(3)]
    lw = [va() for w in range(3)]
    k('s_lshl_b32 s37, s18, 11')
    k('s_lshl_b32 s38, s19, 12')
    k('s_add_u32 s38, s38, 8192')
    k('v_add_u32 %s, s37, %s' % (v(la[0]), v(l16)))
    k('v_add_u32 %s, s38, %s' % (v(lw[0]), v(l16)))
    for w in (1, 2):
        k('v_add_u32 %s, 0x%x, %s' % (v(la[w]), w << 16, v(la[0])))
        k('v_add_u32 %s, 0x%x, %s' % (v(lw[w]), w << 16, v(lw[0])))
    C1, C2, SD = va(2), va(2), va(2)
    class Rec:
        def __init__(self): self.l = []
        def __call__(self, x): self.l.append(x)
    rec = Rec()
    for m in range(2):
        b = ST + 8 * m
        for n in range(2):
            rec('v_add_f32 %s, %s, %s' % (v(b + n), v(b + n), v(b + 2 + n)))
            rec('v_add_f32 %s, %s, %s' % (v(b + 4 + n), v(b + 4 + n), v(b + 6 + n)))
        for n in range(2):
            rec('v_add_f32 %s, %s, %s' % (v(b + n), v(b + n), v(b + 4 + n)))
    rr = [Rec() for n in range(4)]
    for n in range(4):
        x = ST + 8 * (n // 2) + n % 2
        qsum(rr[n], x, x + 2)
    for grp in zip(*[r.l for r in rr]):
        rec.l += list(grp)
    rr = [Rec(), Rec()]
    for m in range(2):
        r_ = rr[m]
        sm, sq = ST + 8 * m, ST + 8 * m + 1
        r_('v_mul_f32 %s, 0xbacccccd, %s' % (v(sm), v(sm)))
        r_('v_mul_f32 %s, 0x3acccccd, %s' % (v(sq), v(sq)))
        r_('v_fma_f32 %s, -%s, %s, %s' % (v(sq), v(sm), v(sm), v(sq)))
        r_('v_max_f32 %s, 0, %s' % (v(sq), v(sq)))
        rnd_bf16(r_, sq, sq)
        rnd_bf16(r_, sm, sm)
        r_('v_add_f32 %s, 0x3727c5ac, %s' % (v(sq), v(sq)))
        rnd_bf16(r_, sq, sq)
        r_('v_sqrt_f32 %s, %s' % (v(sq), v(sq)))
        rnd_bf16(r_, SD + m, sq)
        r_('v_rcp_f32 %s, %s' % (v(sq), v(SD + m)))
        r_('v_mul_f32 %s, 0x%x, %s' % (v(C1 + m), f32_bits(G1), v(sq)))
        r_('v_mul_f32 %s, %s, %s' % (v(sq + 1), v(sq), v(sq)))
        r_('v_mul_f32 %s, 0x%x, %s' % (v(sq), f32_bits(G2), v(sq)))
        r_('v_mul_f32 %s, %s, %s' % (v(C2 + m), v(sq + 1), v(sq)))
    for grp in zip(*[r.l for r in rr]):
        rec.l += list(grp)
    stat_ops = rec.l
    FB = [[va(4, 4) for n in range(6)] for b in range(2)]
    lab1 = k.newlabel('nh1')
    k('s_cmp_lg_u32 s19, 0')
    k('s_cbranch_scc1 %s' % lab1)
    sv = k.save()
    tok0 = dict(tok)
    for nh in range(2):
        if nh:
            k.label(lab1)
            k.restore(sv)
            tok.clear(); tok.update(tok0)
        nw = 4 - nh
        def reads(ks):
            off = (ks % RK) * 16384
            w, off = off >> 16, off & 0xffff
            B = FB[ks % 2]
            L = ['ds_read_b128 %s, %s offset:%d' % (v(B[0], 4), v(la[w]), off),
                 'ds_read_b128 %s, %s offset:%d' % (v(B[2], 4), v(lw[w]), off),
                 'ds_read_b128 %s, %s offset:%d' % (v(B[1], 4), v(la[w]), off + 1024)]
            return L + ['ds_read_b128 %s, %s offset:%d' % (v(B[2 + t], 4), v(lw[w]), off + t * 1024) for t in range(1, nw)]
        def mfmas(ks):
            B = FB[ks % 2]
            return ['%s %s, %s, %s, %s' % (MFMA, v(acc[m][t], 4), v(B[2 + t], 4), v(B[m], 4), v(acc[m][t], 4) if ks else '0') for t in range(nw) for m in range(2)]
        nxt = PD
        freed = 0
        for ks in range(NK + 1):
            fill = []
            if ks < NK:
                if ks % BS == 0:
                    k.barrier(vm=tok[min(NK - 1, ks + BS - 1)], lg=False)
                    if ks // BS < 9: k.stamp(3 + ks // BS)
                    freed = max(0, ks - 1)
                fill = reads(ks)
                ld = []
                while EARLY and ks % BS == 0 and nxt < NK and nxt <= ks + PD + BS - 1 and nxt + 1 - RK <= freed:
                    dma(nxt, 0)(); dma(nxt, 1)()
                    nxt += 1
                while nxt < NK and nxt <= ks + PD and nxt + 1 - RK <= freed:
                    ld += [dma(nxt, 0), dma(nxt, 1)]
                    nxt += 1
                f2 = []
                for n, x in enumerate(fill):
                    f2.append(x)
                    if n in (2, 4) and ld:
                        f2.append(ld.pop(0))
                fill = f2 + ld
                if ks >= 6:
                    n8 = 8 * (ks - 6)
                    ex = stat_ops[n8:n8 + 8]
                    f2 = []
                    for n, x in enumerate(fill):
                        f2.append(x)
                        f2 += ex[2 * n:2 * n + 2] if n < 4 else []
                    fill = f2
            if ks:
                weave(k, mfmas(ks - 1), fill)
            else:
                for x in fill:
                    x() if callable(x) else k(x)
        assert nxt == NK and 8 * (NK - 6) >= len(stat_ops)
        k.stamp(12)
        T = FB[0][0]
        n = 0
        for p in range(2):
            for m in range(2):
                half = nh and p
                tiles = [2] if half else [2 * p, 2 * p + 1]
                xs = [acc[m][t] + r for t in tiles for r in range(4)]
                ts = [T + i for i in range(len(xs))]
                cs = [CS + 4 * t + r for t in tiles for r in range(4)]
                for x_, c_ in zip(xs, cs):
                    k('v_fma_f32 %s, %s, %s, %s' % (v(x_), v(c_), v(ST + 8 * m), v(x_)))
                for x_, t_ in zip(xs, ts):
                    k('v_mul_f32 %s, %s, %s' % (v(t_), v(x_), v(x_)))
                for x_, t_ in zip(xs, ts):
                    k('v_fma_f32 %s, %s, %s, %s' % (v(t_), v(t_), v(C2 + m), v(C1 + m)))
                for x_, t_ in zip(xs, ts):
                    k('v_mul_f32 %s, %s, %s' % (v(t_), v(t_), v(x_)))
                for x_, t_ in zip(xs, ts):
                    k('v_exp_f32 %s, %s' % (v(t_), v(t_)))
                for x_, t_ in zip(xs, ts):
                    k('v_fma_f32 %s, %s, %s, %s' % (v(t_), v(t_), v(SD + m), v(SD + m)))
                for x_, t_ in zip(xs, ts):
                    k('v_rcp_f32 %s, %s' % (v(t_), v(t_)))
                for x_, t_ in zip(xs, ts):
                    k('v_mul_f32 %s, %s, %s' % (v(x_), v(x_), v(t_)))
                Pp = FB[1][n]
                n += 1
                if not half:
                    for r in range(4):
                        k('v_cvt_pk_bf16_f32 %s, %s, %s' % (v(Pp + r), v(xs[r]), v(xs[4 + r])))
                    k('buffer_store_dwordx4 %s, %s, s[12:15], %s offen offset:%d' % (v(Pp, 4), v(l16), s(32 + p), m * 1024))
                else:
                    for r in range(2):
                        k('v_cvt_pk_bf16_f32 %s, %s, %s' % (v(Pp + r), v(xs[2 * r]), v(xs[2 * r + 1])))
                    k('buffer_store_dwordx2 %s, %s, s[12:15], s35 offen offset:%d' % (v(Pp, 2), v(ho), m * 1024))
        k.end()
```

```python
from common import *
from k1 import rnd_bf16, fl
from k2 import twiddle
from gemm2 import G1, G2, weave

ZT = 0
XT = 48 * 1024
AT = XT + 40 * 1024
KBS = 2112
K3_LDS = AT + 20 * KBS
PO, PE, PS = 0, 16384, 32768
SCH = [int(c, 36) for c in os.environ.get('K3S', '221' + '1' * 16 + '22')]
NA = 20

class Rec:
    def __init__(self): self.l = []
    def __call__(self, x): self.l.append(x)

def emit_k3(k, wg0):
    va = Alloc(1, 176)
    k.stamp(0)
    k('s_load_dwordx2 s[16:17], s[0:1], %d' % KA['ws'])
    k('s_load_dwordx2 s[12:13], s[0:1], %d' % KA['x'])
    ti, tq, l16, zo, tmp, xo = [va() for _ in range(6)]
    k('v_lshrrev_b32 %s, 6, v0' % v(ti))
    k('v_and_b32 %s, 63, v0' % v(l16))
    k('v_readfirstlane_b32 s20, %s' % v(ti))
    k('v_lshrrev_b32 %s, 4, %s' % (v(tq), v(l16)))
    k('v_and_b32 %s, 15, v0' % v(ti))
    k('v_bfe_u32 %s, v0, 4, 3' % v(tmp))
    k('v_xor_b32 %s, %s, v0' % (v(tmp), v(tmp)))
    k('v_and_b32 %s, 7, %s' % (v(tmp), v(tmp)))
    k('v_lshrrev_b32 %s, 3, %s' % (v(zo), v(l16)))
    k('v_lshlrev_b32 %s, 13, %s' % (v(zo), v(zo)))
    k('v_lshl_add_u32 %s, %s, 4, %s' % (v(zo), v(tmp), v(zo)))
    k('v_lshlrev_b32 %s, 4, %s' % (v(l16), v(l16)))
    k('s_lshr_b32 s21, s2, 5')
    k('s_lshl_b32 s21, s21, 3')
    k('s_and_b32 s22, s2, 7')
    k('s_add_u32 s21, s21, s22')
    k('s_bfe_u32 s22, s2, 0x20003')
    k('s_lshl_b32 s23, s21, 7')
    k('s_lshl_b32 s24, s20, 16')
    k('s_add_u32 s23, s23, s24')
    k('s_lshl_b32 s24, s20, 10')
    k('s_lshl_b32 s26, s21, 3')
    k('s_add_u32 s26, s26, s20')
    k('s_mul_i32 s27, s26, 5120')
    k('s_mul_i32 s25, s20, 5120')
    k('s_add_u32 s25, s25, %d' % XT)
    k('s_and_b32 s29, s20, 3')
    k('s_lshr_b32 s30, s20, 2')
    k('s_lshr_b32 s19, s29, 1')
    k('s_and_b32 s18, s20, 1')
    k('s_lshl_b32 s54, s30, 1')
    k('s_add_u32 s54, s54, s19')
    k('s_xor_b32 s55, s30, s18')
    k('s_mul_i32 s33, s22, 200')
    k('s_mul_i32 s31, s54, 50')
    k('s_add_u32 s31, s31, s33')
    k('s_add_u32 s32, s31, s18')
    k('s_add_u32 s32, s32, 8')
    k('s_lshl_b32 s32, s32, 10')
    k('s_lshl_b32 s33, s29, 1')
    k('s_add_u32 s31, s31, s33')
    k('s_lshl_b32 s31, s31, 10')
    k('s_mul_i32 s33, s19, 102400')
    k('s_sub_u32 s33, 10240, s33')
    toks = {}
    def zdma():
        srd_ws(k, 4, 16, 'Z')
        for m in range(6):
            k('s_add_u32 m0, s24, %d' % (ZT + m * 8192))
            toks['z'] = k.op('buffer_load_dwordx4 %s, s[4:7], s23 offen lds' % v(zo))
            if m < 5:
                k('s_add_u32 s23, s23, %d' % (64 * 8192))
        k.stamp(1)
    def xdma():
        k('s_mov_b32 s14, 0x%x' % (S * D * 2))
        k('s_mov_b32 s15, 0x00020000')
        k('s_mov_b32 m0, s25')
        for m in range(4):
            k('buffer_load_dwordx4 %s, s[12:15], s27 offen offset:%d lds' % (v(l16), 1024 * m))
        k('s_add_u32 m0, s25, 4096')
        k('s_add_u32 s27, s27, 4096')
        toks['x'] = k.op('buffer_load_dwordx4 %s, s[12:15], s27 offen lds' % v(l16))
        srd_ws(k, 4, 16, 'W1F')
        srd_ws(k, 8, 16, 'CS1')
    TB = va(56, 4)
    ZF = va(32, 4)
    TT = [va(16, 4), va(16, 4)]
    X = [va(5) for r in range(4)]
    CS = TB + 20
    order = []
    for t in range(10):
        order += [(0, t), (1, t)] + ([(2, t)] if t < 5 else [])
    Wr = {}
    wp = [0]
    def wload(n):
        for _ in range(n):
            i_ = wp[0]
            if i_ >= 25:
                return
            wp[0] += 1
            kind, t = order[i_]
            Wr[order[i_]] = r_ = a(4 * i_, 4) if i_ < NA else v(TB + 4 * (i_ - NA), 4)
            sr = 's32' if kind == 2 else 's31'
            k('buffer_load_dwordx4 %s, %s, s[4:7], %s offen offset:%d' % (r_, v(l16), sr, 1024 * (kind & 1)))
            if kind and t < (4 if kind == 2 else 9):
                k('s_add_u32 %s, %s, %s' % (sr, sr, 's33' if t == 4 else '10240'))
    hp_ = [0]
    def hook():
        n = SCH[hp_[0]]
        hp_[0] += 1
        if hp_[0] <= 14:
            n = min(n, NA - wp[0])
        wload(n)
    SA = lambda ks, bt, c: TB + 4 * (4 * ks + 2 * bt + c)
    TC = lambda bt: TB + 32 + 8 * bt
    TS = lambda bt: TB + 36 + 8 * bt
    SB = lambda at: TB + 48 + 4 * at
    an, cs, sn, fb, f4, stp = ZF, ZF + 8, ZF + 16, ZF + 24, ZF + 26, ZF + 27
    q_ = Rec()
    q_('v_lshlrev_b32 %s, 1, %s' % (v(fb), v(ti)))
    q_('v_cvt_f32_u32 %s, %s' % (v(fb), v(fb)))
    q_('v_lshlrev_b32 %s, 2, %s' % (v(f4), v(tq)))
    q_('v_cvt_f32_u32 %s, %s' % (v(f4), v(f4)))
    q_('v_add_f32 %s, 1.0, %s' % (v(fb + 1), v(fb)))
    def angles(mul):
        for b in range(2):
            q_('v_mul_f32 %s, %s, %s' % (v(stp + b), fl(mul), v(fb + b)))
        for b in range(2):
            q_('v_mul_f32 %s, %s, %s' % (v(an + 4 * b), v(stp + b), v(f4)))
        for j in range(1, 4):
            for b in range(2):
                q_('v_add_f32 %s, %s, %s' % (v(an + 4 * b + j), v(an + 4 * b + j - 1), v(stp + b)))
    angles(1 / 32)
    for j in range(8):
        q_('v_cos_f32 %s, %s' % (v(cs + j), v(an + j)))
        q_('v_sin_f32 %s, %s' % (v(sn + j), v(an + j)))
    for j in range(8):
        q_('v_mul_f32 %s, %s, %s' % (v(an + j), fl(0.05), v(an + j)))
    for bt in range(2):
        p, n_ = ('', '-') if bt == 0 else ('-', '')
        for j in range(4):
            c_, s_ = v(cs + 4 * bt + j), v(sn + 4 * bt + j)
            q_('v_cos_f32 %s, %s' % (v(TC(bt) + j), v(an + 4 * bt + j)))
            q_('v_cvt_pk_bf16_f32 %s, %s, %s' % (v(SA(0, bt, 0) + j), c_, s_))
            q_('v_cvt_pk_bf16_f32 %s, -%s, %s' % (v(SA(0, bt, 1) + j), s_, c_))
            q_('v_sin_f32 %s, %s' % (v(TS(bt) + j), v(an + 4 * bt + j)))
            q_('v_cvt_pk_bf16_f32 %s, %s%s, %s%s' % (v(SA(1, bt, 0) + 3 - j), p, c_, n_, s_))
            q_('v_cvt_pk_bf16_f32 %s, %s%s, %s%s' % (v(SA(1, bt, 1) + 3 - j), n_, s_, n_, c_))
    q_('v_lshrrev_b32 %s, 2, %s' % (v(tmp), v(ti)))
    q_('v_add_u32 %s, %s, %s' % (v(fb), v(tmp), v(ti)))
    q_('v_mad_u32_u24 %s, %s, 5, 4' % (v(fb + 1), v(tmp)))
    for b in range(2):
        q_('v_cvt_f32_u32 %s, %s' % (v(fb + b), v(fb + b)))
    angles(0.05)
    for j in range(8):
        q_('v_cos_f32 %s, %s' % (v(cs + j), v(an + j)))
        q_('v_sin_f32 %s, %s' % (v(sn + j), v(an + j)))
    q_('v_cmp_gt_u32 vcc, 3, %s' % v(tq))
    q_('v_cmp_gt_u32 s[34:35], 2, %s' % v(tq))
    for j in range(8):
        q_('v_cvt_pk_bf16_f32 %s, %s, %s' % (v(SB(0) + j), v(cs + j), v(sn + j)))
    for j in range(8):
        q_('v_cndmask_b32 %s, 0, %s, %s' % (v(SB(0) + j), v(SB(0) + j), 's[34:35]' if j % 4 == 3 else 'vcc'))
    za = TT[0]
    kk = xo
    q_('v_mul_u32_u24 %s, 80, %s' % (v(kk), v(tq)))
    q_('v_add_u32 %s, %s, %s' % (v(kk), v(kk), v(ti)))
    xa = TT[1]
    q_('v_lshl_add_u32 %s, %s, 2, s25' % (v(xa), v(kk)))
    for ks in range(2):
        if ks:
            q_('v_sub_u32 %s, 260, %s' % (v(kk), v(kk)))
        for jj in range(4):
            d = za + 4 * ks + jj
            q_('v_add_u32 %s, %d, %s' % (v(d), 20 * jj, v(kk)))
            q_('v_bfe_u32 %s, %s, 1, 3' % (v(tmp), v(d)))
            q_('v_xor_b32 %s, s20, %s' % (v(tmp), v(tmp)))
            q_('v_lshlrev_b32 %s, 7, %s' % (v(d), v(d)))
            q_('v_lshl_add_u32 %s, %s, 4, %s' % (v(d), v(tmp), v(d)))
    wa = va(4)
    q_('v_mul_u32_u24 %s, %d, %s' % (v(wa), 5 * KBS, v(tq)))
    q_('v_lshrrev_b32 %s, 2, %s' % (v(tmp), v(ti)))
    q_('v_mad_u32_u24 %s, %s, 272, %s' % (v(wa), v(tmp), v(wa))) if False else None
    q_('v_mul_u32_u24 %s, 272, %s' % (v(tmp), v(tmp)))
    q_('v_add_u32 %s, %s, %s' % (v(wa), v(wa), v(tmp)))
    q_('v_and_b32 %s, 3, %s' % (v(tmp), v(ti)))
    q_('v_lshl_add_u32 %s, %s, 2, %s' % (v(wa), v(tmp), v(wa)))
    q_('s_lshl_b32 s34, s30, 10')
    q_('s_lshl_b32 s35, s29, 6')
    q_('s_add_u32 s34, s34, s35')
    q_('s_add_u32 s34, s34, %d' % AT)
    q_('v_add_u32 %s, s34, %s' % (v(wa), v(wa)))
    for r in range(1, 4):
        q_('v_xor_b32 %s, %d, %s' % (v(wa + r), 16 * r, v(wa)))
    P1, P2 = [int(x) for x in os.environ.get('K3P', '50,130').split(',')]
    for n, x_ in enumerate(q_.l):
        if n == P1: zdma()
        if n == P2: xdma(); hook()
        k(x_)
    k('s_mov_b32 s36, 0xffff0000')
    k('s_mov_b32 s37, 0x3f803f80')
    hook()
    t1, t2 = va(4, 2), va(4, 2)
    k.stamp(2)
    k.barrier(vm=toks['z'])
    k.stamp(3)
    for n in range(8):
        k('ds_read_b128 %s, %s offset:%d' % (v(ZF + 4 * n, 4), v(za + n), ZT))
    hook()
    k.wait_vm(toks['x'])
    for r in range(4):
        for m in range(5):
            k('ds_read_b32 %s, %s offset:%d' % (v(X[r] + m), v(xa), r * 1280 + 64 * m))
    for ks in range(2):
        for a_ in range(4):
            for b_ in range(a_ + 1, 4):
                k('v_swap_b32 %s, %s' % (v(ZF + 16 * ks + 4 * a_ + b_), v(ZF + 16 * ks + 4 * b_ + a_)))
    def stepA(r):
        T = TT[r % 2]
        for ks in range(2):
            for bt in range(2):
                for c in range(2):
                    d = T + 8 * bt + 4 * c
                    k('%s %s, %s, %s, %s' % (MFMA, v(d, 4), v(ZF + 16 * ks + 4 * r, 4), v(SA(ks, bt, c), 4), v(d, 4) if ks else '0'))
            hook()
    def stepB(r):
        T = TT[r % 2]
        for bt in range(2):
            twiddle(k, T + 8 * bt, T + 8 * bt + 4, TC(bt), TS(bt), t1, t2)
            for n in range(4):
                k('v_cvt_pk_bf16_f32 %s, %s, %s' % (v(ZF + 16 * bt + 4 * r + n), v(T + 8 * bt + n), v(T + 8 * bt + 4 + n)))
            for m in range(5):
                k(('v_and_b32 %s, s36, %s' if bt else 'v_lshlrev_b32 %s, 16, %s') % (v(T + 8 * bt + m), v(X[r] + m)))
            for at in range(2):
                d = T + 8 * bt + 4 * at
                k('%s %s, %s, %s, %s' % (MFMA, v(d, 4), v(SB(at), 4), v(ZF + 16 * bt + 4 * r, 4), v(d, 4)))
            hook()
    def pack(r):
        T = TT[r % 2]
        for m in range(5):
            k('v_cvt_pk_bf16_f32 %s, %s, %s' % (v(X[r] + m), v(T + m), v(T + 8 + m)))
        for m in range(5):
            k('ds_write_b32 %s, %s offset:%d' % (v(wa + r), v(X[r] + m), m * KBS))
    stepA(0); stepA(1); k.stamp(4); stepB(0); stepB(1); k.stamp(5)
    pack(0); stepA(2); pack(1); stepA(3)
    stepB(2); stepB(3)
    k('s_mul_i32 s34, s22, 640')
    k('s_lshl_b32 s35, s29, 7')
    k('s_add_u32 s35, s35, s34')
    k('s_lshl_b32 s38, s19, 6')
    k('s_add_u32 s34, s34, s38')
    k('v_lshlrev_b32 %s, 4, %s' % (v(tmp), v(tq)))
    k('buffer_load_dwordx4 %s, %s, s[8:11], s35 offen' % (v(CS, 4), v(tmp)))
    k('buffer_load_dwordx4 %s, %s, s[8:11], s35 offen offset:64' % (v(CS + 4, 4), v(tmp)))
    k('buffer_load_dwordx4 %s, %s, s[8:11], s34 offen offset:512' % (v(CS + 8, 4), v(tmp)))
    ra = [[zo, xo], [t1, t1 + 1]]
    hr = [t1 + 2, t1 + 3]
    k('v_xor_b32 %s, %s, %s' % (v(tmp), v(ti), v(tq)))
    k('v_lshlrev_b32 %s, 4, %s' % (v(tmp), v(tmp)))
    k('v_lshl_add_u32 %s, %s, 8, %s' % (v(tmp), v(tq), v(tmp)))
    k('s_lshl_b32 s35, s55, 10')
    for b in range(2):
        k('s_xor_b32 s34, s54, %d' % b)
        k('s_mul_i32 s34, s34, %d' % (5 * KBS))
        k('s_add_u32 s34, s34, %d' % AT)
        k('s_add_u32 s38, s34, s35')
        k('v_add_u32 %s, s38, %s' % (v(ra[b][0]), v(tmp)))
        k('s_sub_u32 s38, s34, s35')
        k('s_add_u32 s38, s38, 1024')
        k('v_add_u32 %s, s38, %s' % (v(ra[b][1]), v(tmp)))
    k('s_cmp_gt_u32 s20, 4')
    k('s_cselect_b32 s34, 5, 0')
    k('s_cselect_b32 s35, 1024, 0')
    k('s_mul_i32 s38, s22, 5')
    k('s_add_u32 s38, s38, s20')
    k('s_sub_u32 s34, s38, s34')
    k('s_mul_i32 s39, s34, %d' % KBS)
    k('s_add_u32 s39, s39, s35')
    k('s_add_u32 s39, s39, %d' % AT)
    k('v_add_u32 %s, s39, %s' % (v(hr[0]), v(tmp)))
    k('s_lshl_b32 s34, s34, 17')
    k('s_lshl_b32 s39, s21, 11')
    k('s_add_u32 s50, s34, s39')
    k('s_add_u32 s50, s50, s35')
    k('s_mul_i32 s38, s22, 5')
    k('s_add_u32 s38, s38, s18')
    k('s_add_u32 s38, s38, 3')
    k('s_mul_i32 s34, s38, %d' % KBS)
    k('s_add_u32 s34, s34, %d' % (AT + 1024))
    k('v_add_u32 %s, s34, %s' % (v(hr[1]), v(tmp)))
    k('s_lshl_b32 s38, s38, 17')
    k('s_add_u32 s51, s38, s39')
    k('s_add_u32 s51, s51, 1024')
    k('s_cmp_gt_u32 s20, 1')
    k('s_cselect_b32 s51, 0x40000000, s51')
    pack(2); pack(3)
    hook()
    k.stamp(6)
    k.barrier()
    k.stamp(7)
    AF = [ZF + 4 * n for n in range(8)]
    accm = [TB + 32, TB + 36]
    acco = [TB + 40, TB + 44]
    acce = [TB + 48, TB + 52]
    accs = [TT[0], TT[0] + 4]
    HF = [TT[0] + 8, TT[0] + 12]
    ones = t2
    XB_ = X[0] + (-X[0]) % 4
    reads = [(t, o) for t in range(5) for o in range(2)] + [(t, 1) for t in range(5, 10)] + [(t, 0) for t in range(5, 10)]
    buf = {r_: AF[n % 8] for n, r_ in enumerate(reads)}
    rp = [0]
    def aread():
        t, o = reads[rp[0]]
        rp[0] += 1
        return 'ds_read_b128 %s, %s offset:%d' % (v(buf[(t, o)], 4), v(ra[t // 5][o]), (t % 5) * KBS)
    for n in range(6):
        k(aread())
    for n in range(2):
        k('ds_read_b128 %s, %s' % (v(HF[n], 4), v(hr[n])))
    for n in range(4):
        k('v_mov_b32 %s, s37' % v(ones + n))
    hook()
    srd_ws(k, 12, 16, 'ST0')
    srd_ws(k, 8, 16, 'H')
    srd_ws(k, 44, 16, 'HH')
    q_ = Rec()
    po, pe, ps, ao, h8, sa, so_ = wa, wa + 1, wa + 2, wa + 3, XB_ + 16, XB_ + 17, XB_ + 18
    pe2 = XB_ + 19
    q_('s_lshl_b32 s34, s20, 11')
    q_('v_add_u32 %s, s34, %s' % (v(po), v(l16)))
    q_('s_lshl_b32 s34, s18, 13')
    q_('s_lshl_b32 s35, s54, 10')
    q_('s_add_u32 s34, s34, s35')
    q_('s_lshl_b32 s38, s55, 12')
    q_('s_add_u32 s34, s34, s38')
    q_('v_add_u32 %s, s34, %s' % (v(pe), v(l16)))
    q_('v_xor_b32 %s, 0x1000, %s' % (v(pe2), v(pe)))
    q_('s_lshl_b32 s38, s55, 13')
    q_('s_add_u32 s34, s35, s38')
    q_('v_add_u32 %s, s34, %s' % (v(ps), v(l16)))
    q_('v_lshlrev_b32 %s, 6, %s' % (v(tmp), v(ti)))
    q_('v_lshl_add_u32 %s, %s, 3, %s' % (v(h8), v(tq), v(tmp)))
    q_('v_lshl_add_u32 %s, %s, 4, %s' % (v(ao), v(tq), v(tmp)))
    q_('v_lshrrev_b32 %s, 2, %s' % (v(sa), v(ti)))
    q_('v_lshl_add_u32 %s, %s, 4, %s' % (v(sa), v(sa), v(ti)))
    q_('v_and_b32 %s, 3, %s' % (v(tmp), v(ti)))
    q_('v_lshl_add_u32 %s, %s, 2, %s' % (v(sa), v(sa), v(tmp)))
    q_('s_add_u32 s38, s38, %d' % PS)
    q_('v_lshl_add_u32 %s, %s, 2, s38' % (v(sa), v(sa)))
    q_('v_lshlrev_b32 %s, 28, %s' % (v(so_), v(tq)))
    q_('v_lshl_add_u32 %s, %s, 3, %s' % (v(so_), v(ti), v(so_)))
    q_('s_lshl_b32 s53, s21, 1')
    q_('s_add_u32 s53, s53, s55')
    q_('s_lshl_b32 s53, s53, 7')
    q_('s_lshl_b32 s38, s22, 2')
    q_('s_lshr_b32 s38, 0x0413, s38')
    q_('s_and_b32 s38, s38, 15')
    q_('s_lshl_b32 s39, s21, 5')
    q_('s_add_u32 s38, s38, s39')
    q_('s_lshl_b32 s39, s55, 4')
    q_('s_add_u32 s38, s38, s39')
    q_('s_mul_i32 s39, s22, %d' % (5 * HHR))
    q_('s_add_u32 s38, s38, s39')
    q_('s_mul_i32 s40, s29, %d' % HHR)
    q_('s_add_u32 s40, s40, s38')
    q_('s_lshl_b32 s40, s40, 6')
    q_('s_add_u32 s41, s38, %d' % (4 * HHR))
    q_('s_lshl_b32 s41, s41, 6')
    q_('s_lshl_b32 s42, s19, 5')
    q_('s_add_u32 s41, s41, s42')
    q_('s_lshl_b32 s43, s19, 13')
    q_('s_lshl_b32 s42, s55, 12')
    q_('s_add_u32 s43, s43, s42')
    misc = q_.l
    WD = int(os.environ.get('K3WD', 3))
    def mf(d, w_, b_, first):
        return '%s %s, %s, %s, %s' % (MFMA, v(d, 4), w_, v(b_, 4), '0' if first else v(d, 4))
    for t in range(5):
        while wp[0] < 25 and order[wp[0]][1] <= t + WD:
            wload(1)
        M, O = buf[(t, 0)], buf[(t, 1)]
        ms = [mf(accs[1], v(M, 4), M, t == 0), mf(accs[0], v(ones, 4), M, t == 0),
              mf(acce[0], Wr[(2, t)], M, t == 0), mf(acce[1], Wr[(2, t)], O, t == 0)]
        ms += [mf(acco[n], Wr[(n, t)], O, t == 0) for n in range(2)] + [mf(accm[n], Wr[(n, t)], M, t == 0) for n in range(2)]
        fill = [aread(), aread()]
        if t == 1:
            fill += ['buffer_store_dwordx4 %s, %s, s[8:11], %s offen' % (v(HF[n], 4), v(l16), s(50 + n)) for n in range(2)]
        if t < 4:
            c = -(-len(misc) // 4)
            fill += misc[c * t:c * t + c]
            weave(k, ms, fill)
        else:
            weave(k, ms[:6], fill)
            k('ds_write_b128 %s, %s offset:%d' % (v(ps), v(accs[1], 4), PS + 4096))
            k('ds_write_b128 %s, %s offset:%d' % (v(ps), v(accs[0], 4), PS))
            k(ms[6])
            k('ds_write_b128 %s, %s offset:%d' % (v(pe), v(acce[0], 4), PE))
            k(ms[7])
            k('ds_write_b128 %s, %s offset:%d' % (v(pe2), v(acce[1], 4), PE))
    wload(25)
    k('v_add_u32 %s, s43, %s' % (v(pe), v(l16)))
    k.barrier()
    k.stamp(8)
    st = TT[0]
    for n in range(4):
        k('ds_read2st64_b32 %s, %s offset0:%d offset1:%d' % (v(st + 2 * n, 2), v(sa), 8 * n, 8 * n + 4))
    PR = TT[1]
    KC = XB_
    q_ = Rec()
    mean, var, mb, r1, b1, v2, m2, sd1 = st, st + 4, st + 1, st + 2, st + 3, st + 5, st + 6, st + 7
    for b in (st, st + 4):
        q_('v_add_f32 %s, %s, %s' % (v(b), v(b), v(b + 1)))
        q_('v_add_f32 %s, %s, %s' % (v(b + 2), v(b + 2), v(b + 3)))
    for b in (st, st + 4):
        q_('v_add_f32 %s, %s, %s' % (v(b), v(b), v(b + 2)))
    q_('v_mul_f32 %s, 0x3acccccd, %s' % (v(mean), v(mean)))
    q_('v_mul_f32 %s, 0x3acccccd, %s' % (v(var), v(var)))
    q_('v_fma_f32 %s, -%s, %s, %s' % (v(var), v(mean), v(mean), v(var)))
    q_('v_max_f32 %s, 0, %s' % (v(var), v(var)))
    rnd_bf16(q_, r1, var)
    rnd_bf16(q_, mb, mean)
    q_('v_add_f32 %s, 0x3727c5ac, %s' % (v(r1), v(r1)))
    rnd_bf16(q_, r1, r1)
    q_('v_sqrt_f32 %s, %s' % (v(r1), v(r1)))
    q_('v_sub_f32 %s, %s, %s' % (v(m2), v(mean), v(mb)))
    rnd_bf16(q_, sd1, r1)
    q_('v_rcp_f32 %s, %s' % (v(r1), v(sd1)))
    q_('v_mul_f32 %s, -1.0, %s' % (v(b1), v(mb)))
    q_('v_mul_f32 %s, %s, %s' % (v(v2), v(var), v(r1)))
    q_('v_mul_f32 %s, %s, %s' % (v(m2), v(m2), v(r1)))
    q_('v_mul_f32 %s, %s, %s' % (v(v2), v(v2), v(r1)))
    q_('v_mul_f32 %s, %s, %s' % (v(b1), v(b1), v(r1)))
    rnd_bf16(q_, v2, v2)
    rnd_bf16(q_, m2, m2)
    q_('v_add_f32 %s, 0x3727c5ac, %s' % (v(v2), v(v2)))
    q_('v_sub_f32 %s, %s, %s' % (v(m2), v(b1), v(m2)))
    rnd_bf16(q_, v2, v2)
    q_('v_sqrt_f32 %s, %s' % (v(v2), v(v2)))
    q_('v_mul_f32 %s, %s, %s' % (v(KC), v(m2), v(sd1)))
    rnd_bf16(q_, v2, v2)
    q_('v_mul_f32 %s, %s, %s' % (v(KC + 3), v(v2), v(sd1)))
    q_('v_rcp_f32 %s, %s' % (v(v2), v(KC + 3)))
    q_('v_mul_f32 %s, %s, %s' % (v(KC + 1), fl(G1), v(v2)))
    q_('v_mul_f32 %s, %s, %s' % (v(m2), v(v2), v(v2)))
    q_('v_mul_f32 %s, %s, %s' % (v(v2), fl(G2), v(v2)))
    q_('v_mul_f32 %s, %s, %s' % (v(KC + 2), v(m2), v(v2)))
    stat = q_.l
    ms = [mf(acco[n], Wr[(n, t)], buf[(t, 1)], False) for t in range(5, 10) for n in range(2)]
    fill = [aread() for n in range(2)] + ['ds_read_b128 %s, %s offset:%d' % (v(PR + 4 * n, 4), v(pe), PE + 1024 * n) for n in range(4)]
    weave(k, ms[:4], fill)
    c = len(stat) // 2 - 4
    weave(k, ms[4:], [aread(), aread()] + stat[:c])
    assert rp[0] == len(reads)
    ms = [mf(accm[n], Wr[(n, t)], buf[(t, 0)], False) for t in range(5, 10) for n in range(2)]
    weave(k, ms[:2], stat[c:c + 6])
    for n in range(2):
        k('ds_write_b128 %s, %s offset:%d' % (v(po), v(acco[n], 4), PO + 1024 * n))
    k('v_xor_b32 %s, 0x2000, %s' % (v(po), v(po)))
    weave(k, ms[2:5], stat[c + 6:c + 14])
    k.barrier()
    k.stamp(9)
    OP = XB_ + 4
    for n in range(2):
        k('ds_read_b128 %s, %s offset:%d' % (v(OP + 4 * n, 4), v(po), PO + 1024 * n))
    padd = ['v_add_f32 %s, %s, %s' % (v(PR + 8 * h + n), v(PR + 8 * h + n), v(PR + 8 * h + 4 + n)) for h in range(2) for n in range(4)]
    padd += ['v_add_f32 %s, %s, %s' % (v(PR + n), v(PR + n), v(PR + 8 + n)) for n in range(4)]
    weave(k, ms[5:], stat[c + 14:])
    lab = k.newlabel('up')
    k('s_cmp_gt_u32 s20, 3')
    k('s_cbranch_scc1 %s' % lab)
    sv = k.save()
    for up in range(2):
        if up:
            k.label(lab)
            k.restore(sv)
            k('buffer_store_dwordx2 %s, %s, s[12:15], s53 offen' % (v(r1, 2), v(so_)))
        else:
            for x_ in padd:
                k(x_)
        k.stamp(10)
        for n in range(8):
            k('v_fma_f32 %s, %s, %s, %s' % (v(OP + n), v(CS + n), v(KC), v(OP + n)))
        items = [] if up else [PR + r for r in range(4)]
        for r in range(len(items)):
            k('v_fma_f32 %s, %s, %s, %s' % (v(PR + r), v(CS + 8 + r), v(KC), v(PR + r)))
        for n in range(8):
            k('v_add_f32 %s, %s, %s' % (v(OP + n), v(OP + n), v(accm[0] + n)))
        items += [OP + n for n in range(8)]
        ts = [ZF + n for n in range(len(items))]
        for x_, t_ in zip(items, ts):
            k('v_mul_f32 %s, %s, %s' % (v(t_), v(x_), v(x_)))
        for x_, t_ in zip(items, ts):
            k('v_fma_f32 %s, %s, %s, %s' % (v(t_), v(t_), v(KC + 2), v(KC + 1)))
        for x_, t_ in zip(items, ts):
            k('v_mul_f32 %s, %s, %s' % (v(t_), v(t_), v(x_)))
        for x_, t_ in zip(items, ts):
            k('v_exp_f32 %s, %s' % (v(t_), v(t_)))
        for x_, t_ in zip(items, ts):
            k('v_fma_f32 %s, %s, %s, %s' % (v(t_), v(t_), v(KC + 3), v(KC + 3)))
        for x_, t_ in zip(items, ts):
            k('v_rcp_f32 %s, %s' % (v(t_), v(t_)))
        for x_, t_ in zip(items, ts):
            k('v_mul_f32 %s, %s, %s' % (v(x_), v(x_), v(t_)))
        R = ZF + 16
        if not up:
            for r in range(2):
                k('v_cvt_pk_bf16_f32 %s, %s, %s' % (v(R + 4 + r), v(PR + 2 * r), v(PR + 2 * r + 1)))
            k('buffer_store_dwordx2 %s, %s, s[44:47], s41 offen' % (v(R + 4, 2), v(h8)))
        for r in range(4):
            k('v_cvt_pk_bf16_f32 %s, %s, %s' % (v(R + r), v(OP + r), v(OP + 4 + r)))
        k('buffer_store_dwordx4 %s, %s, s[44:47], s40 offen' % (v(R, 4), v(ao)))
        if up:
            fin = k.newlabel('fin')
            k('s_and_b32 s42, s22, 1')
            k('s_mul_i32 s43, s42, 63')
            k('s_lshl_b32 s48, s29, 8')
            k('s_add_u32 s48, s48, s21')
            k('s_cmp_lg_u32 s48, s43')
            k('s_cbranch_scc1 %s' % fin)
            k('s_lshr_b32 s43, s22, 1')
            k('s_add_u32 s48, s43, 1')
            k('s_sub_u32 s43, %d, s43' % (S + 1))
            k('s_cmp_eq_u32 s42, 0')
            k('s_cselect_b32 s43, s48, s43')
            k('s_add_u32 s43, s43, s39')
            k('s_lshl_b32 s43, s43, 6')
            k('v_lshrrev_b32 %s, 7, %s' % (v(tmp), v(l16)))
            k('v_mul_u32_u24 %s, %d, %s' % (v(tmp), HHR * 64, v(tmp)))
            k('v_and_b32 %s, 0x70, %s' % (v(ao), v(l16)))
            k('v_add_u32 %s, %s, %s' % (v(tmp), v(ao), v(tmp)))
            k('v_mov_b32 %s, 0x40000000' % v(ao))
            k('v_cmp_gt_u32 vcc, 640, %s' % v(l16))
            k('v_cndmask_b32 %s, %s, %s, vcc' % (v(tmp), v(ao), v(tmp)))
            for n in range(4):
                k('v_mov_b32 %s, 0' % v(TT[1] + n))
            k('buffer_store_dwordx4 %s, %s, s[44:47], s43 offen' % (v(TT[1], 4), v(tmp)))
            k.label(fin)
        k.end()
```

```python
from common import *

PREP = dict(
    w1=('w1', 'W1F', 640, 640, 20, 20, 10, 5, 1, 5, 'CS1'),
    w2=('w2', 'W2F', 640, 640, 20, 20, 5, 5, 1, 5, False),
    w3=('w3', 'W3F', 1728, 640, 54, 20, 7, 7, 1, 5, 'CS3'),
    w4=('w4', 'W4F', 640, 1728, 20, 56, 5, 5, 2, 7, False),
)

def prep_count(name):
    p = PREP[name]
    return p[4] * p[9]

def tile_cols(name):
    ka, reg, NC, NR, NU, NKp, NT, P, KPW, NG, cs = PREP[name]
    out = {}
    i = np.arange(16)
    hp = P // 2
    for u in range(NU):
        t, r = divmod(u, P)
        if name == 'w1':
            halves = r == 4
            d = [(t, 2 * r), (t, 2 * r + 1)]
        elif r < hp:
            halves, d = False, [(2 * t, 2 * r), (2 * t, 2 * r + 1)]
        elif r == hp:
            halves, d = True, [(2 * t, NT - 1), (2 * t + 1, NT - 1)]
        else:
            halves, d = False, [(2 * t + 1, 2 * (r - hp - 1)), (2 * t + 1, 2 * (r - hp - 1) + 1)]
        for h in range(2):
            out[d[h]] = 32 * u + (16 * h + i if halves else 2 * i + h)
    return out

PSC = os.environ.get('PSC', '')

def emit_prep(name):
    ka, reg, NC, NR, NU, NKp, NT, P, KPW, NG, cs = PREP[name]
    hp = P // 2
    pitch = NC * 2
    cs = False
    def fn(k, wg0):
        va = Alloc(1, 128)
        k.stamp(0)
        k('s_load_dwordx2 s[4:5], s[0:1], %d' % KA[ka])
        k('s_load_dwordx2 s[16:17], s[0:1], %d' % KA['ws'])
        k('s_sub_u32 s3, s2, %d' % wg0)
        ti, tq, lane, lo, wa, ra = [va() for _ in range(6)]
        k('v_lshrrev_b32 %s, 6, v0' % v(ti))
        k('v_and_b32 %s, 63, v0' % v(lane))
        k('v_readfirstlane_b32 s20, %s' % v(ti))
        k('v_lshrrev_b32 %s, 2, %s' % (v(lo), v(lane)))
        k('v_mul_u32_u24 %s, %d, %s' % (v(lo), pitch, v(lo)))
        k('v_and_b32 %s, 3, v0' % v(ti))
        k('v_lshl_add_u32 %s, %s, 4, %s' % (v(lo), v(ti), v(lo)))
        k('s_mov_b32 s19, s20')
        done = k.newlabel('pdone')
        k('s_mul_i32 s22, s3, %d' % (65536 // NU + 1))
        k('s_lshr_b32 s22, s22, 16')
        k('s_mul_i32 s21, s22, %d' % NU)
        k('s_sub_u32 s3, s3, s21')
        k('s_lshl_b32 s22, s22, 2')
        k('s_add_u32 s19, s19, s22')
        k('s_mul_i32 s21, s19, %d' % KPW)
        k('s_mul_i32 s24, s21, %d' % (32 * pitch))
        k('s_lshl_b32 s25, s3, 6')
        k('s_add_u32 s24, s24, s25')
        k('s_mov_b32 s6, 0x%x' % (NR * pitch))
        k('s_mov_b32 s7, 0x00020000')
        R = va(8 * KPW, 4)
        for n in range(2 * KPW):
            k('buffer_load_dwordx4 %s, %s, s[4:7], s24 offen' % (v(R + 4 * n, 4), v(lo)))
            if n + 1 < 2 * KPW:
                k('s_add_u32 s24, s24, %d' % (16 * pitch))
        k.stamp(1)
        k('s_mul_i32 s22, s3, %d' % (65536 // P + 1))
        k('s_lshr_b32 s22, s22, 16')
        k('s_mul_i32 s23, s22, %d' % P)
        k('s_sub_u32 s23, s3, s23')
        CBS = NKp * NT
        if name == 'w1':
            for (d0, cbs) in ((26, CBS), (28, NT)):
                k('s_mul_i32 %s, s22, %d' % (s(d0), cbs))
                k('s_lshl_b32 s30, s23, 1')
                k('s_add_u32 %s, %s, s30' % (s(d0), s(d0)))
                k('s_add_u32 %s, %s, 1' % (s(d0 + 1), s(d0)))
            hv = '4'
        else:
            for (d0, cbs) in ((26, CBS), (28, NT)) if cs else ((26, CBS),):
                k('s_mul_i32 %s, s22, %d' % (s(d0), 2 * cbs))
                k('s_lshl_b32 s30, s23, 1')
                k('s_add_u32 %s, %s, s30' % (s(d0), s(d0)))
                k('s_cmp_gt_u32 s23, %d' % hp)
                k('s_cselect_b32 s30, %d, 0' % (cbs - 2 * hp - 2))
                k('s_add_u32 %s, %s, s30' % (s(d0), s(d0)))
                k('s_cmp_eq_u32 s23, %d' % hp)
                k('s_cselect_b32 s30, %d, 1' % cbs)
                k('s_add_u32 %s, %s, s30' % (s(d0 + 1), s(d0)))
            hv = str(hp)
        k('s_mul_i32 s30, s21, %d' % NT)
        k('s_add_u32 s26, s26, s30')
        k('s_add_u32 s27, s27, s30')
        k('s_lshl_b32 s26, s26, 10')
        k('s_lshl_b32 s27, s27, 10')
        srd_ws(k, 12, 16, reg)
        k('s_cmp_eq_u32 s23, %s' % hv)
        k('s_mov_b32 s32, 0x05040100')
        k('s_mov_b32 s33, 0x07060302')
        k('s_cselect_b32 s34, 3, 4')
        k('s_cselect_b32 s35, 32, 8')
        k('v_lshlrev_b32 %s, 4, %s' % (v(lane), v(lane)))
        k('s_lshl_b32 s36, s20, 12')
        k('v_add_u32 %s, s36, %s' % (v(wa), v(lane)))
        k('v_bfe_u32 %s, v0, 4, 2' % v(tq))
        k('v_bfe_u32 %s, v0, 2, 2' % v(ra))
        k('v_lshl_add_u32 %s, %s, 3, %s' % (v(ra), v(tq), v(ra)))
        k('v_lshlrev_b32 %s, 6, %s' % (v(ra), v(ra)))
        k('v_lshlrev_b32 %s, s34, %s' % (v(ti), v(ti)))
        k('v_add3_u32 %s, %s, %s, s36' % (v(ra), v(ra), v(ti)))
        rb = lo
        k('v_add_u32 %s, s35, %s' % (v(rb), v(ra)))
        O = va(8 * KPW, 4)
        Tm = va(8, 4)
        ones, acc = va(4, 4), va(8, 4)
        if cs:
            for n in range(4):
                k('v_mov_b32 %s, 0x3f803f80' % v(ones + n))
        lhal, ljoin = k.newlabel('hal'), k.newlabel('join')
        def lds(ks, src):
            b = (ks % 2) * 2048
            for h in range(2):
                k('ds_write_b128 %s, %s offset:%d' % (v(wa), v(src + 4 * h, 4), b + 1024 * h))
            for h in range(2):
                for m in range(2):
                    k('ds_read_b64_tr_b16 %s, %s offset:%d' % (v(O + 8 * ks + 4 * h + 2 * m, 2), v(rb if h else ra), b + 256 * m))
        def stores(ks):
            for h in range(2):
                k('buffer_store_dwordx4 %s, %s, s[12:15], %s offen %s' % (v(O + 8 * ks + 4 * h, 4), v(lane), s(26 + h), PSC))
                if cs:
                    k('%s %s, %s, %s, %s' % (MFMA, v(acc + 4 * h, 4), v(O + 8 * ks + 4 * h, 4), v(ones, 4), v(acc + 4 * h, 4) if ks else '0'))
                if ks + 1 < KPW:
                    k('s_add_u32 %s, %s, %d' % (s(26 + h), s(26 + h), NT * 1024))
        k('s_cmp_eq_u32 s23, %s' % hv)
        k('s_cbranch_scc1 %s' % lhal)
        st = k.save()
        for ks in range(KPW):
            for h in range(2):
                b = R + 8 * ks + 4 * h
                k('v_perm_b32 %s, %s, %s, s32' % (v(Tm + 4 * h), v(b + 1), v(b)))
                k('v_perm_b32 %s, %s, %s, s32' % (v(Tm + 4 * h + 1), v(b + 3), v(b + 2)))
                k('v_perm_b32 %s, %s, %s, s33' % (v(Tm + 4 * h + 2), v(b + 1), v(b)))
                k('v_perm_b32 %s, %s, %s, s33' % (v(Tm + 4 * h + 3), v(b + 3), v(b + 2)))
            lds(ks, Tm)
            if ks:
                stores(ks - 1)
        stores(KPW - 1)
        if cs:
            k.wait_lg()
            k('s_branch %s' % ljoin)
        else:
            k.end()
        k.label(lhal)
        k.restore(st)
        for ks in range(KPW):
            lds(ks, R + 8 * ks)
            if ks:
                stores(ks - 1)
        stores(KPW - 1)
        if cs:
            k.wait_lg()
            k.label(ljoin)
            k('s_nop 7')
            k('s_nop 7')
            k('ds_write_b128 %s, %s' % (v(wa), v(acc, 4)))
            k('ds_write_b128 %s, %s offset:1024' % (v(wa), v(acc + 4, 4)))
            k.barrier()
            lend = k.newlabel('pe')
            k('s_cmp_gt_u32 s20, 1')
            k('s_cbranch_scc1 %s' % lend)
            k('s_lshl_b32 s30, s20, 10')
            k('v_add_u32 %s, s30, %s' % (v(lo), v(lane)))
            for w in range(4):
                k('ds_read_b128 %s, %s offset:%d' % (v(R + 4 * w, 4), v(lo), 4096 * w))
            srd_ws(k, 12, 16, cs)
            k('s_cmp_eq_u32 s20, 0')
            k('s_cselect_b32 s28, s28, s29')
            k('s_lshl_b32 s28, s28, 6')
            k('v_lshlrev_b32 %s, 4, %s' % (v(tq), v(tq)))
            k('v_mov_b32 %s, 0x40000000' % v(lo))
            k('v_and_b32 %s, 15, v0' % v(ti))
            k('v_cmp_eq_u32 vcc, 0, %s' % v(ti))
            k('v_cndmask_b32 %s, %s, %s, vcc' % (v(tq), v(lo), v(tq)))
            for n in range(4):
                k('v_add_f32 %s, %s, %s' % (v(R + n), v(R + n), v(R + 4 + n)))
                k('v_add_f32 %s, %s, %s' % (v(R + 8 + n), v(R + 8 + n), v(R + 12 + n)))
                k('v_add_f32 %s, %s, %s' % (v(R + n), v(R + n), v(R + 8 + n)))
            k('buffer_store_dwordx4 %s, %s, s[12:15], s28 offen' % (v(R, 4), v(tq)))
            k.label(lend)
        k.label(done)
        k.end()
    return fn


def cs_count(name):
    return {'w1': 40, 'w3': 112}[name]

def emit_cs(name):
    ka, reg, NC, NR, NU, NKp, NT, P, KPW, NG, cs = PREP[name]
    def fn(k, wg0):
        k.stamp(0)
        k('s_load_dwordx2 s[16:17], s[0:1], %d' % KA['ws'])
        k('s_sub_u32 s3, s2, %d' % wg0)
        k('v_lshrrev_b32 v1, 6, v0')
        k('v_and_b32 v2, 63, v0')
        k('v_readfirstlane_b32 s20, v1')
        k('v_lshlrev_b32 v2, 4, v2')
        k('s_mul_i32 s21, s3, %d' % (65536 // NT + 1))
        k('s_lshr_b32 s21, s21, 16')
        k('s_mul_i32 s21, s21, %d' % ((NKp - 1) * NT))
        k('s_add_u32 s21, s21, s3')
        k('s_mul_i32 s22, s20, %d' % (5 * NT))
        k('s_add_u32 s21, s21, s22')
        k('s_lshl_b32 s21, s21, 10')
        srd_ws(k, 4, 16, reg)
        for n in range(5):
            k('buffer_load_dwordx4 %s, v2, s[4:7], s21 offen' % v(8 + 4 * n, 4))
            if n < 4:
                k('s_add_u32 s21, s21, %d' % (NT * 1024))
        for n in range(4):
            k('v_mov_b32 %s, 0x3f803f80' % v(4 + n))
        k('v_lshlrev_b32 v1, 4, v0')
        srd_ws(k, 12, 16, cs)
        for n in range(5):
            k('%s v[28:31], %s, v[4:7], %s' % (MFMA, v(8 + 4 * n, 4), 'v[28:31]' if n else '0'))
        k('ds_write_b128 v1, v[28:31]')
        k.barrier()
        lend = k.newlabel('pe')
        k('s_cmp_gt_u32 s20, 0')
        k('s_cbranch_scc1 %s' % lend)
        for w in range(4):
            k('ds_read_b128 %s, v2 offset:%d' % (v(8 + 4 * w, 4), 1024 * w))
        k('s_lshl_b32 s28, s3, 6')
        k('v_and_b32 v3, 15, v0')
        k('v_mov_b32 v1, 0x40000000')
        k('v_cmp_eq_u32 vcc, 0, v3')
        k('v_cndmask_b32 v1, v1, v0, vcc')
        for n in range(4):
            k('v_add_f32 %s, %s, %s' % (v(8 + n), v(8 + n), v(12 + n)))
            k('v_add_f32 %s, %s, %s' % (v(16 + n), v(16 + n), v(20 + n)))
            k('v_add_f32 %s, %s, %s' % (v(8 + n), v(8 + n), v(16 + n)))
        k('buffer_store_dwordx4 v[8:11], v1, s[12:15], s28 offen')
        k.label(lend)
        k.end()
    return fn
```
